```python
import torch

def _softmax(x, axis=-1):
    return torch.softmax(x, dim=axis)
def _gelu(x):
    return torch.nn.functional.gelu(x, approximate="tanh")
def _silu(x):
    return torch.nn.functional.silu(x)
def _sigmoid(x):
    return torch.sigmoid(x)
def _layernorm(x, axis=-1, eps=1e-5):
    m = x.mean(dim=axis, keepdim=True)
    v = x.var(dim=axis, keepdim=True, unbiased=False)
    return (x - m) / torch.sqrt(v + eps)
def _scatter_add(tgt, idx, src, axis=0):
    return tgt.clone().index_add_(axis, idx, src)
def _segment_sum(src, seg, n):
    out = torch.zeros((n,) + src.shape[1:], dtype=src.dtype)
    return out.index_add_(0, seg, src)
def _pad(x, pw):
    flat = tuple(v for pair in reversed(pw) for v in pair)
    return torch.nn.functional.pad(x, flat)

kernel_name = 'recurrent_scan__ssm_conv_s4__moe_arch_mod__prompt'

def setup_inputs():

    _w = (lambda a: (lambda t: t.to(torch.bfloat16) if t.is_floating_point() else t)(torch.as_tensor(a)))
    def _A_setup():
        B, L, D, N = 1, 2048, 512, 128
        A_re = -(lambda _x: torch.exp(torch.as_tensor(_x)))((lambda *s: torch.randn(*s, dtype=torch.bfloat16) * 6.4)(D, N))
        A_im = torch.pi * (lambda *s: torch.randn(*s, dtype=torch.bfloat16) * 0.05)(D, N)
        B_re = (lambda *s: torch.randn(*s, dtype=torch.bfloat16) * 0.2)(D, N)
        B_im = (lambda *s: torch.randn(*s, dtype=torch.bfloat16) * 0.2)(D, N)
        C_re = (lambda *s: torch.randn(*s, dtype=torch.bfloat16) * 0.2)(D, N)
        C_im = (lambda *s: torch.randn(*s, dtype=torch.bfloat16) * 0.2)(D, N)
        log_dt = (lambda *s: torch.randn(*s, dtype=torch.bfloat16) * 0.05)(D) * 0.5 - 4.0
        Dskip = (lambda *s: torch.randn(*s, dtype=torch.bfloat16) * 0.05)(D)
        return {
            "u": _w((lambda *s: torch.randn(*s, dtype=torch.bfloat16) * 0.05)(B, L, D)),
            "A_re": _w(A_re),
            "A_im": _w(A_im),
            "B_re": _w(B_re),
            "B_im": _w(B_im),
            "C_re": _w(C_re),
            "C_im": _w(C_im),
            "log_dt": _w(log_dt),
            "Dskip": _w(Dskip),
        }
    _A_in = _A_setup()

    def _B_setup():
        B, S, D, F, C = 1, 2048, 512, 1376, 2
        return {
            "x": _w((lambda *s: torch.randn(*s, dtype=torch.bfloat16) * 0.05)(B, S, D)),
            "w_r": _w((lambda *s: torch.randn(*s, dtype=torch.bfloat16) * 6.4)(D)),
            "w_gate": _w((lambda *s: torch.randn(*s, dtype=torch.bfloat16) * 0.1)(D, F)),
            "w_up": _w((lambda *s: torch.randn(*s, dtype=torch.bfloat16) * 0.1)(D, F)),
            "w_down": _w((lambda *s: torch.randn(*s, dtype=torch.bfloat16) * 0.1)(F, D)),
        }
    _B_in = _B_setup()

    return {
        "A_u": _A_in["u"],
        "A_A_re": _A_in["A_re"],
        "A_A_im": _A_in["A_im"],
        "A_B_re": _A_in["B_re"],
        "A_B_im": _A_in["B_im"],
        "A_C_re": _A_in["C_re"],
        "A_C_im": _A_in["C_im"],
        "A_log_dt": _A_in["log_dt"],
        "A_Dskip": _A_in["Dskip"],
        "B_x": _B_in["x"],
        "B_w_r": _B_in["w_r"],
        "B_w_gate": _B_in["w_gate"],
        "B_w_up": _B_in["w_up"],
        "B_w_down": _B_in["w_down"],
    }

def reference(A_u, A_A_re, A_A_im, A_B_re, A_B_im, A_C_re, A_C_im, A_log_dt, A_Dskip, B_x, B_w_r, B_w_gate, B_w_up, B_w_down):
    def _A_ref(u, A_re, A_im, B_re, B_im, C_re, C_im, log_dt, Dskip):
        Bsz, L, D = u.shape
        dt = torch.exp(log_dt)[:, None]
        A = A_re + 1j * A_im
        Bc = B_re + 1j * B_im
        Cc = C_re + 1j * C_im
        logdA = dt * A
        dB = dt * Bc
        l = (lambda x, dt: x.to(dt))(torch.arange(L), A_re.dtype)
        P = torch.exp(logdA[:, :, None] * l[None, None, :])
        K = torch.einsum("dn,dnl,dn->dl", Cc, P, dB).real
        L2 = 2 * L
        Kp = _pad(K, ((0, 0), (0, L)))
        up = (lambda x, *d: x.permute(*d))(u, 0, 2, 1)
        up = _pad(up, ((0, 0), (0, 0), (0, L)))
        Kf = (lambda x, axes=(-2,-1): torch.fft.rfft2(x.float(), dim=axes))(Kp[:, None, :], axes=(-2, -1))
        Uf = (lambda x, axes=(-2,-1): torch.fft.rfft2(x.float(), dim=axes))(up[:, :, None, :], axes=(-2, -1))
        Yf = Uf * Kf[None, :, :, :]
        y = (lambda x, s, axes=(-2,-1): torch.fft.irfft2(x, s=s, dim=axes).to(torch.bfloat16))(Yf, (1, L2), axes=(-2, -1))[:, :, 0, :L]
        y = (lambda x, *d: x.permute(*d))(y, 0, 2, 1) + u * Dskip[None, None, :]
        return y

    def _B_ref(x, w_r, w_gate, w_up, w_down):
        B, S, D = x.shape
        C = 2
        r = x @ w_r
        idx = torch.argsort(-r, axis=-1)[:, :C]
        idx_e = (lambda x, n, axis: torch.repeat_interleave(x, n, dim=axis))(idx.reshape(B, C, 1), D, axis=2)
        x_sel = (lambda x, i, axis: torch.take_along_dim(x, i, dim=axis))(x, idx_e, axis=1)
        g = _silu(x_sel @ w_gate)
        u = x_sel @ w_up
        y = (g * u) @ w_down
        r_sel = _sigmoid((lambda x, i, axis: torch.take_along_dim(x, i, dim=axis))(r, idx, axis=1))
        y = y * r_sel.reshape(B, C, 1)
        b_off = (torch.arange(B) * S).reshape(B, 1)
        flat_idx = (idx + b_off).reshape(B * C)
        zero = (x * 0.0).reshape(B * S, D)
        upd = _scatter_add(zero, flat_idx, y.reshape(B * C, D), axis=0)
        return x + upd.reshape(B, S, D)

    x = A_u
    xn = _layernorm(x, axis=-1)
    s = _A_ref(xn, A_A_re, A_A_im, A_B_re, A_B_im, A_C_re, A_C_im, A_log_dt, A_Dskip)
    g = _silu(_B_ref(xn, B_w_r, B_w_gate, B_w_up, B_w_down))
    return x + s * g
```

```python
import re

TRANS = ("v_exp_f32","v_log_f32","v_rcp_f32","v_rsq_f32","v_sqrt_f32","v_sin_f32","v_cos_f32","v_rcp_iflag_f32")

def _regs(tok):
    tok = tok.strip()
    tok = tok.lstrip("-").strip("|")
    m = re.fullmatch(r"([vsa])(\d+)", tok)
    if m: return [(m.group(1), int(m.group(2)))]
    m = re.fullmatch(r"([vsa])\[(\d+):(\d+)\]", tok)
    if m: return [(m.group(1), i) for i in range(int(m.group(2)), int(m.group(3))+1)]
    if tok == "vcc": return [("s",106),("s",107)]
    if tok == "vcc_lo": return [("s",106)]
    if tok == "vcc_hi": return [("s",107)]
    if tok == "exec": return [("s",126),("s",127)]
    if tok == "exec_lo": return [("s",126)]
    if tok == "exec_hi": return [("s",127)]
    if tok == "m0": return [("s",124)]
    return []

class Ins:
    def __init__(self, text):
        self.text = text
        t = text.split(";")[0].strip()
        self.label = t.endswith(":")
        self.directive = t.startswith(".")
        self.empty = (t == "")
        self.op = ""; self.dst = []; self.src = []; self.kind = "none"
        self.srcC = []; self.srcAB = []; self.wdata = []
        if self.label or self.directive or self.empty: return
        parts = t.split(None, 1)
        op = parts[0]; self.op = op
        rest = parts[1] if len(parts) > 1 else ""
        ops = []; depth = 0; cur = ""
        for ch in rest:
            if ch == "[": depth += 1
            if ch == "]": depth -= 1
            if ch == "," and depth == 0: ops.append(cur); cur = ""
            else: cur += ch
        ops.append(cur)
        ops = [o.strip() for o in ops]
        mods = ""
        if ops:
            last = ops[-1].split(None, 1)
            if len(last) > 1: ops[-1] = last[0]; mods = last[1]
        self.mods = mods
        if op.startswith("v_pk_") and ("op_sel:[0,1]" in mods or "op_sel:[0,1,0]" in mods):
            raise Exception("op_sel 010 pattern misbehaves next to another wave's MFMA: " + text)
        R = [_regs(o) for o in ops]
        b = op.replace("_e32","").replace("_e64","").replace("_dpp","").replace("_sdwa","")
        self.base = b
        self.dpp = ("quad_perm" in mods or "row_" in mods or "wave_" in mods)
        if op.startswith("v_mfma"):
            self.kind = "mfma"; self.dst = R[0]; self.srcAB = R[1]+R[2]; self.srcC = R[3]; self.src = self.srcAB+self.srcC
            self.passes = 8 if "32x32" in op else 4
        elif op.startswith("v_"):
            self.kind = "valu"
            if b.startswith("v_cmp"):
                self.dst = R[0]; self.src = sum(R[1:], [])
                if b.startswith("v_cmpx"): raise Exception("no cmpx")
            elif b in ("v_readfirstlane_b32","v_readlane_b32"):
                self.dst = R[0]; self.src = sum(R[1:], [])
            elif b.startswith("v_permlane") and "swap" in b:
                self.dst = R[0]+R[1]; self.src = R[0]+R[1]
            elif b in ("v_add_co_u32","v_sub_co_u32","v_addc_co_u32","v_subb_co_u32"):
                self.dst = R[0]+R[1]; self.src = sum(R[2:], [])
            else:
                self.dst = R[0]; self.src = sum(R[1:], [])
                if b in ("v_fmac_f32","v_dot2c_f32_bf16","v_writelane_b32","v_pk_fmac_f16") or self.dpp: self.src = self.src + R[0]
                if b == "v_cndmask_b32" and len(ops) == 3: self.src += _regs("vcc")
        elif op.startswith("ds_"):
            self.kind = "ds"
            if b.startswith(("ds_read","ds_bpermute","ds_permute","ds_swizzle")) or "_rtn" in b:
                self.dst = R[0]; self.src = sum(R[1:], [])
            else:
                self.src = sum(R, [])
            if "addtid" in b: self.src += _regs("m0")
        elif op.startswith(("global_","buffer_","flat_")):
            self.kind = "vmem"
            if "lds" in b or " lds" in (" "+mods):
                self.src = sum(R, []) + _regs("m0")
            elif "load" in b:
                self.dst = R[0]; self.src = sum(R[1:], [])
            elif "atomic" in b and "sc0" in mods:
                self.dst = R[0]; self.src = sum(R[1:], [])
            else:
                self.src = sum(R, [])
                if "x3" in b or "x4" in b:
                    self.wdata = R[1] if op.startswith("global_") else R[0]
        elif op.startswith("s_"):
            self.kind = "salu"
            if b in ("s_nop","s_waitcnt","s_barrier","s_endpgm","s_setprio","s_sleep","s_branch") or b.startswith("s_cbranch") or b.startswith("s_cmp") or b.startswith("s_bitcmp"):
                self.src = sum(R, [])
            else:
                self.dst = R[0]; self.src = sum(R[1:], [])
                if "saveexec" in b: self.dst += _regs("exec")
        else:
            raise Exception("unknown op " + text)
    def states(self):
        if self.kind == "none": return 0
        if self.op == "s_nop": return int(self.text.split(";")[0].split()[1], 0) + 1
        return 1

def need(p, c):
    n = 0
    pd = set(p.dst); cs = set(c.src); cd = set(c.dst)
    if p.kind == "valu":
        vd = {r for r in pd if r[0] in "va"}; sd = {r for r in pd if r[0] == "s"}
        isdot = p.base.startswith("v_dot")
        if vd & cs:
            if c.kind == "valu":
                if c.dpp: n = max(n, 2)
                if c.base in ("v_readlane_b32","v_readfirstlane_b32"): n = max(n, 1)
                if c.base.startswith("v_permlane"): n = max(n, 2)
                if p.base in TRANS and c.base not in TRANS: n = max(n, 1)
                if "dst_sel" in p.mods or ("op_sel" in p.mods and not p.base.startswith("v_pk")): n = max(n, 1)
            if c.kind == "mfma": n = max(n, 2)
        if isdot and (vd & (cs | cd)):
            same_c = (c.base == p.base and not (vd & set(c.src[:2])) )
            if not same_c: n = max(n, 3)
        if sd & cs:
            if c.kind == "valu":
                n = max(n, 4 if c.base in ("v_readlane_b32","v_writelane_b32") else 2)
            if c.kind == "vmem": n = max(n, 5)
            if c.kind == "salu" and c.base.startswith("s_cbranch"): n = max(n, 0)
    if p.kind == "mfma":
        t = {4: (6, 8, 3), 8: (10, 12, 7)}[p.passes]
        if c.kind == "mfma":
            if pd & set(c.srcAB): n = max(n, t[1])
            if pd & set(c.srcC):
                if not (c.srcC == p.dst and c.passes == p.passes): n = max(n, t[0])
            if (pd & cd) and c.dst != p.dst: n = max(n, t[0])
        elif c.kind in ("valu","ds","vmem"):
            if pd & (cs | cd): n = max(n, t[1])
            if c.kind == "valu" and (set(p.srcC) & cd): n = max(n, t[2])
    if p.kind == "vmem" and p.wdata and (set(p.wdata) & cd):
        n = max(n, 2)
    if p.kind == "salu" and ("s",124) in pd and ("s",124) in cs and c.kind in ("ds","vmem"):
        n = max(n, 1)
    return n

class Asm:
    def __init__(self):
        self.L = []
        self.uid = 0
    def __call__(self, text):
        for ln in text.strip("\n").split("\n"):
            ln = ln.strip()
            if ln: self.L.append(ln)
    def lab(self, name): self.L.append(name + ":")
    def newlab(self, p="L"):
        self.uid += 1; return f"{p}_{self.uid}"
    def fix(self, verbose=False):
        ins = [Ins(t) for t in self.L]
        W = 14
        changed = True
        nins = 0
        while changed:
            changed = False
            labels = {i.text.split(";")[0].strip()[:-1]: k for k, i in enumerate(ins) if i.label}
            srcs = {}
            for k, i in enumerate(ins):
                if i.kind == "salu" and (i.base == "s_branch" or i.base.startswith("s_cbranch")):
                    tgt = i.text.split(";")[0].split()[1]
                    srcs.setdefault(labels[tgt], []).append(k)
            def preds(k, dist, seen):
                j = k - 1
                while j >= 0 and dist < W:
                    p = ins[j]
                    if p.label:
                        for s in srcs.get(j, []):
                            if (s, dist) not in seen:
                                seen.add((s, dist))
                                yield from preds(s + 1, dist, seen)
                    if p.kind == "salu" and p.base in ("s_branch", "s_endpgm") and j != k - 1:
                        return
                    if p.kind == "salu" and p.base in ("s_branch", "s_endpgm") and j == k - 1 and not getattr(preds, "via", False):
                        pass
                    if p.kind != "none":
                        yield p, dist
                        dist += p.states()
                    j -= 1
            for k, c in enumerate(ins):
                if c.kind == "none": continue
                short = 0
                for p, d in preds(k, 0, set()):
                    r = need(p, c) - d
                    if r > short: short = r; why = p.text
                if short > 0:
                    if verbose: print(f"nop {short} before [{c.text}] after [{why}]")
                    ins.insert(k, Ins(f"s_nop {short-1}"))
                    nins += 1
                    changed = True
                    break
        self.L = [i.text for i in ins]
        return nins
    def text(self):
        out = []
        for t in self.L:
            out.append(t if (t.endswith(":") or t.startswith(".")) else "  " + t)
        return "\n".join(out) + "\n"
```

```python
import sys, os
sys.path.insert(0, os.path.dirname(__file__))
from asmlib import Asm
NAME = "recurrent_scan__ssm_conv_s4__moe_arch_mod__prompt_kernel"
OPT = dict(stamps=0, dbg=0)
for a in sys.argv[2:]:
    k, v = a.split("="); OPT[k] = int(v, 0)
STAMPS = OPT["stamps"]

KEYS = 0x400000; EPOCH = 0x408000; PART = 0x410000; STAMPW = 0x800000
STG = 15504
U0 = 4*STG; UPH = 1184; UCH = 4*UPH
Y0 = U0 + 4*UCH; YBLK = 4352
MISC = Y0 + 4*YBLK + 544
C_U, C_Y, C_ST, C_W, C_F, SEL = 0, 4, 20, 24, 28, 32
XCH = MISC + 64; FRED = XCH + 512
W0 = Y0 + 20480; WU = W0 + 16384; WD = W0 + 32768; WDS = 1056
LDS_TOTAL = WD + 16*WDS
KXO = 40
LOG2E = "0x3fb8aa3b"; NLOG2E = "0xbfb8aa3b"; INV2PI = "0x3e22f983"
TIMEOUT = 20000

A = Asm()
def vr(b, n): return f"v[{b}:{b+n-1}]"
def sr(b, n=2): return f"s[{b}:{b+n-1}]"
nstamp = [0]
def stamp(i):
    if STAMPS: A(f"s_memrealtime s[{64+2*i}:{65+2*i}]")
def stamp_flush():
    if not STAMPS: return
    A(f"""s_lshl_b32 s60, s2, 3
    s_add_u32 s60, s60, s3
    s_lshl_b32 s60, s60, 7
    s_add_u32 s60, s60, {STAMPW}
    v_mov_b32 v1, s60
    s_mov_b64 exec, 1
    s_waitcnt lgkmcnt(0)""")
    for i in range(16):
        A(f"v_mov_b32 v2, s{64+2*i}\nv_mov_b32 v3, s{65+2*i}\nglobal_store_dwordx2 v1, v[2:3], s[40:41] offset:{8*i}")

def signal(off, vM, vOne):
    A(f"s_mov_b64 exec, 1\nds_add_u32 v{vM}, v{vOne} offset:{off}\ns_mov_b64 exec, -1")
def spin(off, target, vM, vT, extra="", nonzero=False):
    l = A.newlab("SPIN"); d = A.newlab("SPD")
    A(f"s_mov_b32 s59, 0")
    A.lab(l)
    A(f"ds_read_b32 v{vT}, v{vM} offset:{off}")
    if extra: A(extra)
    A(f"""s_add_u32 s59, s59, 1
    s_cmp_gt_u32 s59, {TIMEOUT*16}
    s_cbranch_scc1 {d}
    s_waitcnt lgkmcnt(0)
    v_readfirstlane_b32 s58, v{vT}""")
    A(f"s_cmp_eq_u32 s58, 0" if nonzero else f"s_cmp_lt_u32 s58, {target}")
    A(f"s_cbranch_scc1 {l}")
    A.lab(d)
    A("s_waitcnt lgkmcnt(0)")

A(f"""s_cmp_ge_u32 s2, 256
s_cbranch_scc1 END
s_load_dwordx16 s[8:23], s[0:1], 0
s_load_dwordx16 s[24:39], s[0:1], 64
s_load_dwordx2 s[40:41], s[0:1], 128""")
if STAMPS:
    for i in range(16): A(f"s_mov_b64 s[{64+2*i}:{65+2*i}], 0")
stamp(0)
A(f"""v_lshrrev_b32 v1, 6, v0
v_and_b32 v0, 63, v0
v_readfirstlane_b32 s3, v1
s_and_b32 s42, s2, 7
s_lshr_b32 s43, s2, 3
s_and_b32 s44, s43, 15
s_lshr_b32 s5, s43, 4
s_lshl_b32 s4, s42, 4
s_add_u32 s4, s4, s44
s_mul_i32 s6, s42, 11
s_add_u32 s6, s6, s44
s_cmp_lt_u32 s44, 11
s_cselect_b32 s6, s6, 999
s_cmp_eq_u32 s5, 1
s_cselect_b32 s6, s6, 999
s_and_b32 s7, s3, 3
s_mov_b32 s56, 0xffff0000
s_cmp_lt_u32 s3, 4
s_cbranch_scc1 KWAVE""")

vM, vOne, vT = 1, 2, 3
XA, XB, WR = 16, 24, 32
A(f"""s_setprio 2
s_lshr_b32 s42, s2, 2
s_lshl_b32 s42, s42, 5
s_and_b32 s43, s2, 3
s_lshl_b32 s43, s43, 2
s_add_u32 s42, s42, s43
v_and_b32 v4, 4, v0
v_and_b32 v5, 3, v0
v_lshl_or_b32 v4, v4, 2, v5
v_add_u32 v6, s42, v4
v_lshrrev_b32 v7, 3, v0
s_lshl_b32 s43, s7, 8
v_lshl_add_u32 v8, v7, 4, s43
v_lshl_add_u32 v9, v6, 10, v8
v_mov_b32 v10, {EPOCH}
s_waitcnt lgkmcnt(0)
global_load_dwordx4 {vr(XA,4)}, v9, s[8:9]
global_load_dwordx4 {vr(XB,4)}, v9, s[8:9] offset:128
global_load_dwordx4 {vr(WR,4)}, v8, s[28:29]
global_load_dwordx4 {vr(WR+4,4)}, v8, s[28:29] offset:128
global_load_dword v11, v10, s[40:41] sc1
s_lshl_b32 s44, s4, 3
s_load_dwordx2 s[54:55], s[24:25], s44
s_barrier""")
A(f"""v_mov_b32 v{vM}, {MISC}
v_mov_b32 v{vOne}, 1
v_and_b32 v12, 7, v0
v_lshrrev_b32 v13, 4, v0
s_lshl_b32 s43, s7, 2
s_add_u32 s43, s43, {XCH}
v_lshl_add_u32 v13, v13, 4, s43
v_lshl_add_u32 v13, v12, 6, v13
v_lshlrev_b32 v14, 6, v12
v_add_u32 v14, {XCH}, v14
s_lshl_b32 s43, s7, 20
s_lshl_b32 s44, s2, 7
s_add_u32 s43, s43, s44
v_lshl_add_u32 v15, v7, 16, s43
v_lshl_add_u32 v15, v12, 4, v15
s_add_u32 s44, s40, 32768
s_addc_u32 s45, s41, 0
s_add_u32 s46, s40, 524288
s_addc_u32 s47, s41, 0
s_add_u32 s48, s40, 557056
s_addc_u32 s49, s41, 0
s_mov_b32 s57, 0x3f803f80""")
A("s_waitcnt vmcnt(1)")
stamp(1)
xs = [XA+i for i in range(4)] + [XB+i for i in range(4)]
for i in range(8):
    c = lambda r: "0" if i == 0 else f"v{r}"
    A(f"""v_dot2_f32_bf16 v40, v{xs[i]}, s57, {c(40)}
    v_dot2_f32_bf16 v41, v{xs[i]}, v{xs[i]}, {c(41)}
    v_dot2_f32_bf16 v42, v{xs[i]}, v{WR+i}, {c(42)}
    v_dot2_f32_bf16 v43, v{WR+i}, s57, {c(43)}""")
A(f"""v_mov_b32 v{XA+4}, v{XA+2}
v_mov_b32 v{XA+5}, v{XA+3}
v_permlane32_swap_b32 v40, v41
v_mov_b32 v{XB+4}, v{XB+2}
v_permlane32_swap_b32 v42, v43
v_add_f32 v40, v40, v41
v_add_f32 v42, v42, v43
v_mov_b32 v{XB+5}, v{XB+3}
v_permlane16_swap_b32 v40, v42
v_add_f32 v40, v40, v42
s_waitcnt vmcnt(0)
v_add_u32 v11, 1, v11
v_add_f32_dpp v40, v40, v40 row_ror:8 row_mask:0xf bank_mask:0xf
ds_write_b32 v13, v40""")
signal(C_ST, vM, vOne)
A(f"""v_mov_b32 v{XA+3}, v11
v_mov_b32 v{XA+7}, v11
v_mov_b32 v{XB+3}, v11
v_mov_b32 v{XB+7}, v11
v_readfirstlane_b32 s50, v11""")
spin(C_ST, 4, vM, vT, extra="\n".join(f"ds_read_b128 {vr(44+4*q,4)}, v14 offset:{16*q}" for q in range(4)))
for q in (0, 2, 1, 3):
    A(f"v_pk_add_f32 {vr(44+4*q,2)}, {vr(44+4*q,2)}, {vr(46+4*q,2)}")
A(f"""v_add_f32 v44, v44, v45
v_add_f32 v52, v52, v53
v_mul_f32 v44, 0x3b000000, v44
v_mul_f32 v52, 0x3b000000, v52
v_fma_f32 v52, -v44, v44, v52
v_max_f32 v52, 0, v52
v_cvt_pk_bf16_f32 v52, v52, v52
v_and_b32 v52, s56, v52
v_add_f32 v52, 0x3727c5ac, v52
v_cvt_pk_bf16_f32 v52, v52, v52
v_and_b32 v52, s56, v52
v_sqrt_f32 v52, v52
v_add_f32 v48, v48, v49
v_cvt_pk_bf16_f32 v{XA+2}, v44, v52
v_cvt_pk_bf16_f32 v{XA+6}, v44, v52
global_store_dwordx4 v15, {vr(XA,4)}, s[40:41] sc1
v_cvt_pk_bf16_f32 v{XB+2}, v44, v52
global_store_dwordx4 v15, {vr(XA+4,4)}, s[44:45] sc1
v_cvt_pk_bf16_f32 v{XB+6}, v44, v52
global_store_dwordx4 v15, {vr(XB,4)}, s[46:47] sc1
global_store_dwordx4 v15, {vr(XB+4,4)}, s[48:49] sc1""")
stamp(2)
A(f"""s_cmp_lg_u32 s7, 3
s_cbranch_scc1 NOKEYST
v_and_b32 v45, s56, v{XA+2}
v_lshlrev_b32 v46, 16, v{XA+2}
v_rcp_f32 v45, v45
v_add_f32 v56, v56, v57
v_fma_f32 v48, -v46, v56, v48
v_mul_f32 v48, v48, v45
v_cvt_pk_bf16_f32 v48, v48, v48
v_ashrrev_i32 v49, 31, v48
v_or_b32 v49, 0x80000000, v49
v_xor_b32 v48, v48, v49
v_lshlrev_b32 v49, 1, v6
v_or_b32 v49, 0x8000, v49
v_and_or_b32 v60, v48, s56, v49
v_max_u32_dpp v50, v60, v60 quad_perm:[1,0,3,2] row_mask:0xf bank_mask:0xf
v_max_u32_dpp v50, v50, v50 quad_perm:[2,3,0,1] row_mask:0xf bank_mask:0xf
v_max_u32_dpp v50, v50, v50 row_half_mirror row_mask:0xf bank_mask:0xf
v_cmp_ne_u32 vcc, v60, v50
v_cndmask_b32 v51, 0, v60, vcc
v_cndmask_b32 v53, 0, v{vOne}, vcc
v_max_u32_dpp v51, v51, v51 quad_perm:[1,0,3,2] row_mask:0xf bank_mask:0xf
v_max_u32_dpp v51, v51, v51 quad_perm:[2,3,0,1] row_mask:0xf bank_mask:0xf
v_max_u32_dpp v51, v51, v51 row_half_mirror row_mask:0xf bank_mask:0xf
s_lshl_b32 s43, s2, 5
s_add_u32 s43, s43, {KEYS}
v_cmp_ge_u32 vcc, v60, v51
v_or_b32 v60, v60, v53
v_mov_b32 v61, v{XA+2}
v_mov_b32 v62, v11
v_mov_b32 v63, 0
v_lshl_add_u32 v53, v53, 4, s43
s_and_b64 exec, vcc, 0xff
global_store_dwordx4 v53, v[60:63], s[40:41] sc1
s_mov_b64 exec, -1
NOKEYST:""")
GA, GB, KV = 64, 80, 96
A(f"""s_add_u32 s42, s7, 2
s_add_u32 s43, s7, 4
s_cmp_lt_u32 s7, 2
s_cselect_b32 s43, s7, s43
s_cselect_b32 s52, s7, 99
s_cmp_eq_u32 s5, 0
s_cselect_b32 s51, s43, s42
s_cselect_b32 s52, s42, s52
s_lshl_b32 s42, s4, 15
s_lshl_b32 s43, s51, 12
s_add_u32 s43, s43, s42
s_add_u32 s44, s40, s43
s_addc_u32 s45, s41, 0
s_and_b32 s43, s52, 7
s_lshl_b32 s43, s43, 12
s_add_u32 s43, s43, s42
s_add_u32 s46, s40, s43
s_addc_u32 s47, s41, 0
v_lshlrev_b32 v8, 9, v7
v_lshl_add_u32 v8, v12, 4, v8
v_mul_u32_u24 v9, {UPH}, v5
v_lshl_add_u32 v9, v7, 4, v9
v_and_b32 v10, 4, v0
v_lshl_add_u32 v9, v10, 1, v9
s_lshl_b32 s42, s51, 7
s_add_u32 s42, s42, {U0+128}
v_add_u32 v10, s42, v9
s_lshl_b32 s42, s52, 7
s_add_u32 s42, s42, {U0+128}
v_add_u32 v9, s42, v9
s_lshl_b32 s53, s5, 2
s_or_b32 s53, s53, s7
s_mov_b32 s59, 0""")
for k in range(4): A(f"v_mov_b32 v{GB+4*k+3}, v11")
A("s_waitcnt vmcnt(0)")
stamp(3)
A.lab("SWL")
for k in range(4): A(f"global_load_dwordx4 {vr(GA+4*k,4)}, v8, s[44:45] offset:{128*k} sc1")
A("s_cmp_gt_u32 s52, 7\ns_cbranch_scc1 SWNB")
for k in range(4): A(f"global_load_dwordx4 {vr(GB+4*k,4)}, v8, s[46:47] offset:{128*k} sc1")
A.lab("SWNB")
A("s_cmp_eq_u32 s53, 7\ns_cbranch_scc1 KEYSR")
A.lab("SWC")
A(f"""s_add_u32 s59, s59, 1
s_waitcnt vmcnt(0)
v_min3_u32 v16, v{GA+3}, v{GA+7}, v{GA+11}
v_max3_u32 v17, v{GA+3}, v{GA+7}, v{GA+11}
v_min3_u32 v16, v16, v{GA+15}, v{GB+3}
v_max3_u32 v17, v17, v{GA+15}, v{GB+3}
v_min3_u32 v16, v16, v{GB+7}, v{GB+11}
v_max3_u32 v17, v17, v{GB+7}, v{GB+11}
v_min3_u32 v16, v16, v{GB+15}, v11
v_max3_u32 v17, v17, v{GB+15}, v11
s_cmp_gt_u32 s59, {TIMEOUT}
v_cmp_ne_u32 vcc, v16, v17
s_cbranch_scc1 SWD
s_and_b64 exec, exec, vcc
s_cbranch_execnz SWL
SWD:
s_mov_b64 exec, -1""")
stamp(4)
R_, N_, X_, XN_, P_ = 16, 20, 24, 40, 56
def norm(G, va):
    for k in range(4): A(f"v_and_b32 v{R_+k}, s56, v{G+4*k+2}")
    for k in range(4): A(f"v_rcp_f32 v{R_+k}, v{R_+k}\nv_lshlrev_b32 v{N_+k}, 16, v{G+4*k+2}")
    for k in range(4): A(f"v_lshlrev_b32 v{X_+k}, 16, v{G+4*k}")
    for h in range(2): A(f"v_pk_mul_f32 {vr(N_+2*h,2)}, {vr(N_+2*h,2)}, {vr(R_+2*h,2)} neg_lo:[1,0] neg_hi:[1,0]")
    for j in range(4):
        if j < 3:
            jj = j+1
            for k in range(4):
                if jj & 1: A(f"v_and_b32 v{X_+4*jj+k}, s56, v{G+4*k+(jj>>1)}")
                else: A(f"v_lshlrev_b32 v{X_+4*jj+k}, 16, v{G+4*k+(jj>>1)}")
        for h in range(2): A(f"v_pk_fma_f32 {vr(XN_+4*j+2*h,2)}, {vr(X_+4*j+2*h,2)}, {vr(R_+2*h,2)}, {vr(N_+2*h,2)}")
        for h in range(2): A(f"v_cvt_pk_bf16_f32 v{P_+2*j+h}, v{XN_+4*j+2*h}, v{XN_+4*j+2*h+1}")
        A(f"ds_write_b64 v{va}, {vr(P_+2*j,2)} offset:{j*UCH}")
A("s_cmp_gt_u32 s52, 7\ns_cbranch_scc1 NONB")
norm(GB, 9)
A.lab("NONB")
norm(GA, 10)
signal(C_U, vM, vOne)
stamp(5)
A("s_setprio 0\ns_cmp_eq_u32 s53, 3\ns_cbranch_scc1 KEYSR")
A.lab("AFTK")

FA, FD, FB, FDG = 128, 160, 176, 192
A(f"""v_and_b32 v12, 15, v0
v_lshrrev_b32 v13, 4, v0
s_cmp_gt_u32 s6, 85
s_cbranch_scc1 NOF1""")
A(f"""v_lshrrev_b32 v14, 2, v12
s_lshl_b32 s42, s7, 12
s_add_u32 s42, s42, {W0}
v_lshl_add_u32 v15, v13, 8, s42
v_lshl_add_u32 v15, v14, 5, v15
v_lshl_add_u32 v15, v5, 3, v15
v_lshl_add_u32 v14, v13, 2, v14
v_mul_u32_u24 v14, {WDS}, v14
s_lshl_b32 s42, s7, 8
s_add_u32 s42, s42, {WD}
v_add_u32 v14, s42, v14
v_lshl_add_u32 v14, v5, 3, v14""")
A.lab("NOF1")
spin(SEL+4, 0, vM, vT, extra=f"ds_read_b32 v8, v{vM} offset:{SEL}", nonzero=True)
A(f"""v_readfirstlane_b32 s60, v8
s_mov_b32 s61, s58
s_bfe_u32 s62, s60, 0xb0001
s_bfe_u32 s63, s61, 0xb0001""")
stamp(6)
A(f"""s_cmp_gt_u32 s6, 85
s_cbranch_scc1 NOF2
s_setprio 2
v_and_b32 v8, 1, v0
v_mov_b32 v9, s60
v_mov_b32 v10, s61
v_cmp_eq_u32 vcc, 1, v8
v_cndmask_b32 v9, v9, v10, vcc
v_bfe_u32 v10, v9, 1, 11
v_lshrrev_b32 v8, 2, v12
v_lshlrev_b32 v8, 6, v8
v_lshl_add_u32 v8, v13, 4, v8
v_and_b32 v16, 2, v0
v_lshl_add_u32 v8, v16, 2, v8
s_lshl_b32 s42, s7, 8
v_lshl_add_u32 v16, v10, 10, s42
v_add_u32 v8, v8, v16
global_load_dwordx2 v[200:201], v8, s[8:9]
v_lshrrev_b32 v16, 5, v10
v_bfe_u32 v17, v10, 2, 2
v_lshl_add_u32 v16, v16, 2, v17
v_and_b32 v17, 1, v9
v_lshl_add_u32 v16, v16, 1, v17
v_lshlrev_b32 v16, 4, v16
v_add_u32 v16, {KEYS+4}, v16
global_load_dword v202, v16, s[40:41] sc1""")
rd = ""
for m in range(2):
    for c in range(4):
        for h in range(2):
            rd += f"ds_read_b64_tr_b16 {vr(FA+16*m+4*c+2*h,2)}, v15 offset:{m*16384+c*1024+128*h}\n"
for c in range(4):
    for t in range(2):
        rd += f"ds_read_b64_tr_b16 {vr(FD+4*c+2*t,2)}, v14 offset:{64*c+32*t}\n"
spin(C_W, 4, vM, vT)
A(rd)
A.lab("NOF2")

GG, CC, YY = 64, 80, 96
A(f"""s_lshl_b32 s44, s54, 16
s_and_b32 s45, s54, s56
s_lshl_b32 s46, s55, 16
s_and_b32 s47, s55, s56""")
def precompute():
    for j in range(4):
        for k in range(4): A(f"v_mul_f32 v{16+k}, {NLOG2E}, v{XN_+4*j+k}")
        for k in range(4): A(f"v_exp_f32 v{16+k}, v{16+k}")
        for k in range(4): A(f"v_mul_f32 v{20+k}, s{44+j}, v{XN_+4*j+k}")
        for k in range(4): A(f"v_add_f32 v{16+k}, 1.0, v{16+k}")
        for k in range(4): A(f"v_rcp_f32 v{16+k}, v{16+k}")
        for k in range(4): A(f"v_mul_f32 v{GG+4*k+j}, v{16+k}, v{XN_+4*j+k}")
        for k in range(4): A(f"v_fma_f32 v{CC+4*k+j}, v{20+k}, v{GG+4*k+j}, v{X_+4*j+k}")
A(f"""s_cmp_gt_u32 s6, 85
s_cbranch_scc1 NOF3""")
for i in range(16): A(f"v_mov_b32 v{208+i}, 0")
A(f"""v_lshl_add_u32 v8, v13, 1, v12
v_lshlrev_b32 v8, 4, v8
s_lshl_b32 s42, s7, 8
s_add_u32 s42, s42, {FRED}
v_add_u32 v8, s42, v8
v_and_b32 v9, 1, v0
v_lshl_add_u32 v9, v13, 1, v9
v_lshlrev_b32 v9, 4, v9
v_bfe_u32 v10, v0, 1, 2
v_lshl_add_u32 v9, v10, 2, v9
v_add_u32 v9, {FRED}, v9
v_bfe_i32 v10, v0, 1, 1
v_lshrrev_b32 v16, 1, v12
v_lshl_add_u32 v16, v16, 2, v13
v_lshlrev_b32 v16, 4, v16
v_and_b32 v17, 1, v0
v_lshl_add_u32 v16, v17, 11, v16
s_lshl_b32 s42, s6, 12
s_lshl_b32 s43, s7, 9
s_add_u32 s42, s42, s43
s_add_u32 s42, s42, {PART}
v_add_u32 v16, s42, v16
s_waitcnt vmcnt(0)""")
stamp(7)
A(f"""v_and_b32 v203, s56, v202
v_lshlrev_b32 v202, 16, v202
v_rcp_f32 v203, v203
v_lshlrev_b32 v204, 16, v200
v_and_b32 v205, s56, v200
v_lshlrev_b32 v206, 16, v201
v_and_b32 v207, s56, v201
v_pk_add_f32 v[204:205], v[204:205], v[202:203] op_sel_hi:[1,0] neg_lo:[0,1] neg_hi:[0,1]
v_pk_add_f32 v[206:207], v[206:207], v[202:203] op_sel_hi:[1,0] neg_lo:[0,1] neg_hi:[0,1]
v_cvt_pk_bf16_f32 v200, v204, v205
v_cvt_pk_bf16_f32 v201, v206, v207
v_lshlrev_b32 v204, 16, v200
v_and_b32 v205, s56, v200
v_lshlrev_b32 v206, 16, v201
v_and_b32 v207, s56, v201
v_pk_mul_f32 v[204:205], v[204:205], v[202:203] op_sel:[0,1] op_sel_hi:[1,1]
v_pk_mul_f32 v[206:207], v[206:207], v[202:203] op_sel:[0,1] op_sel_hi:[1,1]
v_cvt_pk_bf16_f32 v{FB}, v204, v205
v_cvt_pk_bf16_f32 v{FB+1}, v206, v207""")
for s in range(1, 8):
    for h in range(2):
        A(f"v_mov_b32_dpp v{FB+2*s+h}, v{FB+h} row_shl:{2*s} row_mask:0xf bank_mask:0xf bound_ctrl:0")
A("s_waitcnt lgkmcnt(0)")
for c in range(4):
    for m in range(2):
        A(f"v_mfma_f32_16x16x32_bf16 {vr(FDG+4*m,4)}, {vr(FA+16*m+4*c,4)}, {vr(FB+4*c,4)}, " + ("0" if c == 0 else vr(FDG+4*m,4)))
A(f"""s_mov_b32 s42, 0x00030003
s_mov_b32 s43, 0x00030003
s_mov_b64 exec, s[42:43]
ds_write_b128 v8, {vr(FDG,4)}
ds_write_b128 v8, {vr(FDG+4,4)} offset:128""")
signal(C_F, vM, vOne)
spin(C_F, 4, vM, vT, extra="\n".join(f"ds_read_b32 v{FB+2*w+m}, v9 offset:{256*w+128*m}" for w in range(4) for m in range(2)))
A(f"""v_pk_add_f32 {vr(FB,2)}, {vr(FB,2)}, {vr(FB+2,2)}
v_pk_add_f32 {vr(FB+4,2)}, {vr(FB+4,2)}, {vr(FB+6,2)}
v_pk_add_f32 {vr(FB,2)}, {vr(FB,2)}, {vr(FB+4,2)}
v_cvt_pk_bf16_f32 v{FB}, v{FB}, v{FB+1}
v_lshlrev_b32 v{FB+1}, 16, v{FB}
v_mul_f32 v{FB+2}, {NLOG2E}, v{FB+1}
v_exp_f32 v{FB+2}, v{FB+2}
v_and_b32 v{FB}, s56, v{FB}
v_add_f32 v{FB+2}, 1.0, v{FB+2}
v_rcp_f32 v{FB+2}, v{FB+2}
v_mul_f32 v{FB+1}, v{FB+1}, v{FB+2}
v_cvt_pk_bf16_f32 v{FB+1}, v{FB+1}, v{FB+1}
v_and_b32 v{FB+1}, s56, v{FB+1}
v_mul_f32 v{FB}, v{FB}, v{FB+1}
v_mov_b32_dpp v{FB+1}, v{FB} quad_perm:[0,1,0,1] row_mask:0xf bank_mask:0xf
v_mov_b32_dpp v{FB+2}, v{FB} quad_perm:[2,3,2,3] row_mask:0xf bank_mask:0xf
v_cvt_pk_bf16_f32 v{FB}, v{FB+1}, v{FB+2}
v_and_b32 v{FB+1}, v10, v{FB}
v_bfi_b32 v{FB}, v10, 0, v{FB}""")
for c in range(4):
    for t in range(2):
        for i1 in range(2):
            own = (c & 1) == i1
            A(f"v_mov_b32_dpp v{208+4*c+2*t+i1}, v{FB+t} " + ("quad_perm:[0,1,2,3]" if own else "row_ror:4") + f" row_mask:0xf bank_mask:{hex(1<<c)}")
for c in range(4):
    A(f"v_mfma_f32_16x16x32_bf16 {vr(FDG,4)}, {vr(FD+4*c,4)}, {vr(208+4*c,4)}, " + ("0" if c == 0 else vr(FDG,4)))
for i in range(4): A(f"s_mov_b32 s{96+i}, {hex(0x07060500+i)}")
for i in range(4): A(f"v_perm_b32 v{FDG+i}, v{FDG+i}, v11, s{96+i}")
A(f"global_store_dwordx4 v16, {vr(FDG,4)}, s[40:41] sc1\ns_setprio 0")
stamp(8)
A.lab("NOF3")
precompute()
A(f"""s_lshl_b32 s42, s51, 8
v_lshl_add_u32 v8, v7, 5, v4
v_add_u32 v8, s42, v8""")
for k in range(4):
    A(f"""v_add_u32 v9, {4*k}, v8
    v_cmp_ne_u32 vcc, s62, v9
    v_cmp_ne_u32 {sr(96)}, s63, v9
    s_and_b64 {sr(44+2*k) if k < 3 else sr(98)}, vcc, {sr(96)}""")
A(f"""s_lshl_b32 s42, s4, 3
s_add_u32 s42, s42, 4096
v_lshl_add_u32 v8, v8, 10, s42
v_add_u32 v9, 8192, v8
v_lshrrev_b32 v10, 2, v0
v_mul_u32_u24 v10, 272, v10
v_lshl_add_u32 v10, v5, 4, v10
s_mul_i32 s42, s7, {YBLK}
s_add_u32 s42, s42, {Y0}
s_add_u32 s43, s42, 272
s_cmp_ge_u32 s51, 6
s_cselect_b32 s42, s43, s42
v_add_u32 v10, s42, v10
s_lshl_b32 s42, s7, 2
v_add_u32 v14, s42, v{vM}""")
stamp(9)
spin(C_Y, 4, 14, vT, extra="\n".join(f"ds_read_b128 {vr(YY+4*k,4)}, v10 offset:{64*k}" for k in range(4)))
stamp(10)
for k in range(4):
    for h in range(2): A(f"v_pk_fma_f32 {vr(YY+4*k+2*h,2)}, {vr(YY+4*k+2*h,2)}, {vr(GG+4*k+2*h,2)}, {vr(CC+4*k+2*h,2)}")
    for h in range(2): A(f"v_cvt_pk_bf16_f32 v{YY+4*k+h}, v{YY+4*k+2*h}, v{YY+4*k+2*h+1}")
    A(f"s_mov_b64 exec, {sr(44+2*k) if k < 3 else sr(98)}")
    A(f"global_store_dwordx2 v{8+(k>>1)}, {vr(YY+4*k,2)}, s[36:37] offset:{-4096 if (k&1)==0 else 0}")
    A("s_mov_b64 exec, -1")
stamp(11)
A(f"""s_cmp_gt_u32 s7, 1
s_cbranch_scc1 FIN
s_cmp_eq_u32 s7, 0
s_cselect_b32 s60, s60, s61
s_cselect_b32 s62, s62, s63
s_lshr_b32 s42, s62, 8
s_add_u32 s43, s42, 6
s_and_b32 s43, s43, 7
s_lshr_b32 s44, s43, 2
s_cmp_eq_u32 s44, s5
s_cbranch_scc1 FIN
s_and_b32 s44, s42, 3
s_cmp_eq_u32 s5, 0
s_cselect_b32 s43, s44, s43""")
A(f"""s_lshl_b32 s44, s62, 10
s_lshl_b32 s45, s4, 3
s_add_u32 s44, s44, s45
v_lshl_add_u32 v8, v13, 1, s44
global_load_ushort v16, v8, s[8:9]
s_lshr_b32 s44, s62, 5
s_lshl_b32 s44, s44, 2
s_bfe_u32 s46, s62, 0x20002
s_add_u32 s44, s44, s46
s_lshl_b32 s44, s44, 1
s_and_b32 s46, s60, 1
s_add_u32 s44, s44, s46
s_lshl_b32 s44, s44, 4
s_add_u32 s44, s44, {KEYS+4}
v_mov_b32 v9, s44
global_load_dword v17, v9, s[40:41] sc1
v_lshl_add_u32 v9, v13, 1, s45
global_load_ushort v18, v9, s[24:25]
s_lshl_b32 s44, s7, 11
s_lshl_b32 s45, s4, 4
s_add_u32 s44, s44, s45
s_add_u32 s44, s44, {PART}
v_lshl_add_u32 v9, v0, 12, s44
v_add_u32 v10, 64, v0
v_min_u32 v10, 85, v10
v_lshl_add_u32 v10, v10, 12, s44
s_mul_i32 s44, s43, {YBLK}
s_add_u32 s44, s44, {Y0}
s_add_u32 s45, s44, 272
s_cmp_ge_u32 s42, 6
s_cselect_b32 s44, s45, s44
s_bfe_u32 s45, s62, 0x40004
s_mul_i32 s45, s45, 272
s_add_u32 s44, s44, s45
s_and_b32 s45, s62, 15
s_lshl_b32 s45, s45, 4
s_add_u32 s44, s44, s45
v_lshl_add_u32 v15, v13, 2, s44
s_lshl_b32 s44, s43, 2
v_add_u32 v14, s44, v{vM}
s_ashr_i32 s44, s60, 31
s_orn2_b32 s44, 0x80000000, s44
s_xor_b32 s44, s44, s60
s_and_b32 s44, s44, s56
v_mov_b32 v19, {NLOG2E}
v_mul_f32 v19, s44, v19
v_exp_f32 v19, v19
s_mov_b32 s46, 0x0c0c0400
s_mov_b32 s47, 0x04000c0c
v_add_f32 v19, 1.0, v19
v_rcp_f32 v19, v19
s_waitcnt vmcnt(0)
v_cvt_pk_bf16_f32 v19, v19, v19
v_and_b32 v19, s56, v19
v_lshlrev_b32 v16, 16, v16
v_lshlrev_b32 v18, 16, v18
v_and_b32 v20, s56, v17
v_lshlrev_b32 v17, 16, v17
v_rcp_f32 v20, v20
v_sub_f32 v17, v16, v17
v_cvt_pk_bf16_f32 v17, v17, v17
v_and_b32 v17, s56, v17
v_mul_f32 v17, v17, v20
v_cvt_pk_bf16_f32 v17, v17, v17
v_and_b32 v17, s56, v17
v_mul_f32 v18, v18, v17
v_cvt_pk_bf16_f32 v18, v18, v18
v_and_b32 v18, s56, v18
s_mov_b32 s48, 0
PPOLL:
global_load_dwordx4 v[24:27], v9, s[40:41] sc1
global_load_dwordx4 v[28:31], v10, s[40:41] sc1
s_add_u32 s48, s48, 1
s_waitcnt vmcnt(0)
v_perm_b32 v20, v25, v24, s46
v_perm_b32 v21, v27, v26, s47
v_perm_b32 v22, v29, v28, s46
v_perm_b32 v23, v31, v30, s47
v_or_b32 v20, v20, v21
v_or_b32 v22, v22, v23
v_cmp_ne_u32 vcc, v20, v11
v_cmp_ne_u32 s[44:45], v22, v11
s_or_b64 vcc, vcc, s[44:45]
s_cmp_gt_u32 s48, {TIMEOUT}
s_cbranch_scc1 PDONE
s_cbranch_vccnz PPOLL
PDONE:""")
stamp(12)
A(f"""s_mov_b64 exec, 0x3fffff
v_pk_add_f32 v[24:25], v[24:25], v[28:29]
v_pk_add_f32 v[26:27], v[26:27], v[30:31]
s_mov_b64 exec, -1
v_permlane32_swap_b32 v24, v26
v_permlane32_swap_b32 v25, v27
v_add_f32 v24, v24, v26
v_add_f32 v25, v25, v27
v_permlane16_swap_b32 v24, v25
v_add_f32 v24, v24, v25
v_add_f32_dpp v24, v24, v24 row_ror:8 row_mask:0xf bank_mask:0xf
v_add_f32_dpp v24, v24, v24 row_ror:4 row_mask:0xf bank_mask:0xf
v_add_f32_dpp v24, v24, v24 row_ror:2 row_mask:0xf bank_mask:0xf
v_add_f32_dpp v24, v24, v24 row_ror:1 row_mask:0xf bank_mask:0xf
v_cvt_pk_bf16_f32 v24, v24, v24
v_and_b32 v24, s56, v24
v_mul_f32 v24, v24, v19
v_cvt_pk_bf16_f32 v24, v24, v24
v_and_b32 v24, s56, v24
v_add_f32 v24, v24, v17
v_cvt_pk_bf16_f32 v24, v24, v24
v_and_b32 v24, s56, v24
v_mul_f32 v25, {NLOG2E}, v24
v_exp_f32 v25, v25
v_add_f32 v25, 1.0, v25
v_rcp_f32 v25, v25
v_mul_f32 v24, v24, v25
v_cvt_pk_bf16_f32 v24, v24, v24
v_and_b32 v24, s56, v24""")
spin(C_Y, 4, 14, vT, extra="ds_read_b32 v26, v15")
A(f"""v_cvt_pk_bf16_f32 v26, v26, v26
v_and_b32 v26, s56, v26
v_add_f32 v26, v26, v18
v_cvt_pk_bf16_f32 v26, v26, v26
v_and_b32 v26, s56, v26
v_mul_f32 v26, v26, v24
v_cvt_pk_bf16_f32 v26, v26, v26
v_and_b32 v26, s56, v26
v_add_f32 v26, v26, v16
v_cvt_pk_bf16_f32 v26, v26, v26
s_mov_b32 s44, 0x00010001
s_mov_b32 s45, 0x00010001
s_mov_b64 exec, s[44:45]
global_store_short v8, v26, s[36:37]
s_mov_b64 exec, -1""")
stamp(13)
A.lab("FIN")
if STAMPS:
    A("s_waitcnt vmcnt(0)")
    stamp(14)
stamp_flush()
A("s_endpgm")

A.lab("KEYSR")
A(f"""v_lshlrev_b32 v13, 5, v0
v_add_u32 v13, {KEYS}, v13
v_add_u32 v14, 4096, v13
s_mov_b32 s48, 0
KPOLL:""")
for i in range(8):
    A(f"global_load_dwordx3 {vr(KV+4*i,3)}, v{13+(i>>2)}, s[40:41] offset:{2048*((i>>1)&1)+16*(i&1)} sc1")
A(f"""s_add_u32 s48, s48, 1
s_waitcnt vmcnt(0)
v_min3_u32 v16, v{KV+2}, v{KV+6}, v{KV+10}
v_max3_u32 v17, v{KV+2}, v{KV+6}, v{KV+10}
v_min3_u32 v16, v16, v{KV+14}, v{KV+18}
v_max3_u32 v17, v17, v{KV+14}, v{KV+18}
v_min3_u32 v16, v16, v{KV+22}, v{KV+26}
v_max3_u32 v17, v17, v{KV+22}, v{KV+26}
v_min3_u32 v16, v16, v{KV+30}, v11
v_max3_u32 v17, v17, v{KV+30}, v11
s_cmp_gt_u32 s48, {TIMEOUT}
v_cmp_ne_u32 vcc, v16, v17
s_cbranch_scc1 KDONE
s_and_b64 exec, exec, vcc
s_cbranch_execnz KPOLL
KDONE:
s_mov_b64 exec, -1""")
def k1(p): return KV+8*p
def k2(p): return KV+8*p+4
for a, b in ((0,1),(2,3),(0,2)):
    A(f"""v_min_u32 v16, v{k1(a)}, v{k1(b)}
    v_max_u32 v{k1(a)}, v{k1(a)}, v{k1(b)}
    v_max3_u32 v{k2(a)}, v{k2(a)}, v{k2(b)}, v16""")
m1, m2 = k1(0), k2(0)
for pat in ("quad_perm:[1,0,3,2]", "quad_perm:[2,3,0,1]", "row_half_mirror", "row_mirror"):
    A(f"""v_min_u32_dpp v16, v{m1}, v{m1} {pat} row_mask:0xf bank_mask:0xf
    v_max_u32_dpp v{m1}, v{m1}, v{m1} {pat} row_mask:0xf bank_mask:0xf
    v_max_u32_dpp v{m2}, v{m2}, v{m2} {pat} row_mask:0xf bank_mask:0xf
    v_max_u32 v{m2}, v{m2}, v16""")
for i in range(4): A(f"v_readlane_b32 s{96+i}, v{m1}, {16*i}")
for i in range(4): A(f"v_readlane_b32 s{60+i}, v{m2}, {16*i}")
for a, b in ((0,1),(2,3),(0,2)):
    A(f"""s_min_u32 s48, s{96+a}, s{96+b}
    s_max_u32 s{96+a}, s{96+a}, s{96+b}
    s_max_u32 s{60+a}, s{60+a}, s{60+b}
    s_max_u32 s{60+a}, s{60+a}, s48""")
A(f"""v_mov_b32 v16, s96
s_or_b32 s60, s60, 0x8000
v_mov_b32 v17, s60
ds_write_b64 v{vM}, v[16:17] offset:{SEL}
s_cmp_lg_u32 s2, 0
s_cbranch_scc1 KNOEP
v_mov_b32 v16, {EPOCH}
s_mov_b64 exec, 1
global_store_dword v16, v11, s[40:41] sc1
s_mov_b64 exec, -1
KNOEP:
s_cmp_eq_u32 s53, 3
s_mov_b32 s53, 0
s_cbranch_scc1 AFTK
s_branch SWC""")

AF, ACC, XT, BB, RAW, DT = 16, 80, 144, 148, 180, 188
A.lab("KWAVE")
A(f"""v_mov_b32 v4, 0
v_mov_b32 v5, 0
v_mov_b32 v6, 0
v_mov_b32 v7, 0
s_mul_i32 s42, s7, 5120
s_add_u32 s42, s42, {Y0}
v_lshl_add_u32 v8, v0, 4, s42""")
for i in range(5): A(f"ds_write_b128 v8, v[4:7] offset:{1024*i}")
A(f"""v_and_b32 v12, 15, v0
v_lshrrev_b32 v13, 4, v0
s_mul_i32 s51, s7, {UCH}
s_add_u32 s51, s51, {U0}
v_mul_u32_u24 v8, {UPH}, v13
v_lshl_add_u32 v8, v12, 3, v8
v_add_u32 v8, s51, v8
ds_write_b64 v8, v[4:5]
s_lshl_b32 s42, s4, 2
s_add_u32 s42, s42, s7
s_lshl_b32 s43, s42, 8
v_lshl_add_u32 v8, v0, 2, s43
s_lshl_b32 s43, s42, 1
s_and_b32 s43, s43, -4
s_waitcnt lgkmcnt(0)
s_load_dword s44, s[22:23], s43""")
for i in range(6): A(f"global_load_dword v{RAW+i}, v8, s[{10+2*i}:{11+2*i}]")
A(f"""s_cmp_gt_u32 s6, 85
s_cbranch_scc1 NODMA
v_lshrrev_b32 v8, 1, v0
s_lshl_b32 s43, s7, 7
v_add_u32 v8, s43, v8
v_mul_u32_u24 v8, 2752, v8
v_and_b32 v9, 1, v0
v_lshl_add_u32 v8, v9, 4, v8
s_lshl_b32 s43, s6, 5
v_add_u32 v8, s43, v8
s_lshl_b32 s45, s7, 12
s_add_u32 s45, s45, {W0}""")
for i in range(4):
    A(f"""s_mov_b32 m0, s45
    s_add_u32 s46, s45, 16384
    global_load_lds_dwordx4 v8, s[30:31]
    s_mov_b32 m0, s46
    s_add_u32 s45, s45, 1024
    global_load_lds_dwordx4 v8, s[32:33]""")
    if i < 3: A(f"v_add_u32 v8, {32*2752}, v8")
A(f"""s_lshl_b32 s43, s6, 14
s_lshl_b32 s45, s7, 12
s_add_u32 s43, s43, s45
v_lshl_add_u32 v8, v0, 4, s43
s_mul_i32 s45, s7, {4*WDS}
s_add_u32 s45, s45, {WD}""")
for i in range(4):
    A(f"""s_mov_b32 m0, s45
    s_add_u32 s45, s45, {WDS-1024}
    global_load_lds_dwordx4 v8, s[34:35] offset:{1024*i}""")
A.lab("NODMA")
A(f"""s_barrier
s_mul_i32 s50, s7, {STG}
s_mov_b32 m0, s50
v_mov_b32 v{vM}, {MISC}
v_mov_b32 v{vOne}, 1
v_mov_b32 v8, 0x3f80
ds_write_addtid_b32 v8 offset:0
v_mul_u32_u24 v9, 272, v12
v_lshl_add_u32 v9, v13, 4, v9
v_add_u32 v9, s50, v9
s_waitcnt lgkmcnt(0)
s_lshl_b32 s45, s44, 16
s_and_b32 s44, s44, s56
s_bitcmp1_b32 s42, 0
s_cselect_b32 s44, s44, s45
v_mov_b32 v8, {LOG2E}
v_mul_f32 v8, s44, v8
v_exp_f32 v8, v8
s_mov_b32 s52, 0x01000c0c
s_mov_b32 s53, 0
v_cvt_pk_bf16_f32 v8, v8, v8
v_and_b32 v8, s56, v8
v_mul_f32 v10, {LOG2E}, v8
v_mul_f32 v11, {INV2PI}, v8""")
for i in range(12): A(f"v_mov_b32 v{DT+i}, 0")
A("s_cmp_gt_u32 s6, 85\ns_cbranch_scc1 KW0\ns_waitcnt vmcnt(12)\ns_branch KW1\nKW0:\ns_waitcnt vmcnt(0)\nKW1:")
stamp(1)
A.lab("KLOOP")
Z = 80
Z8, Z128 = 96, 98
T = 100
for i in range(6): A(f"v_perm_b32 v{T+i}, v{RAW+i}, v{RAW+i}, s52")
A(f"""v_mul_f32 v{T}, v{T}, v10
v_mul_f32 v{T+1}, v{T+1}, v11
v_pk_mul_f32 {vr(T+6,2)}, {vr(T+4,2)}, {vr(T+2,2)} op_sel:[0,0] op_sel_hi:[0,1] neg_hi:[0,1]
v_mul_f32 v{T+8}, 0x41000000, v{T}
v_mul_f32 v{T+9}, 0x41000000, v{T+1}
v_mul_f32 v{T+10}, 0x43000000, v{T}
v_mul_f32 v{T+11}, 0x43000000, v{T+1}
v_pk_fma_f32 {vr(T+6,2)}, {vr(T+4,2)}, {vr(T+2,2)}, {vr(T+6,2)} op_sel:[1,1,0] op_sel_hi:[1,0,1] neg_lo:[0,1,0] neg_hi:[0,1,0]
v_fract_f32 v{T+1}, v{T+1}
v_fract_f32 v{T+9}, v{T+9}
v_fract_f32 v{T+11}, v{T+11}
v_exp_f32 v{T}, v{T}
v_exp_f32 v{T+8}, v{T+8}
v_exp_f32 v{T+10}, v{T+10}
v_cos_f32 v{Z+2}, v{T+1}
v_sin_f32 v{Z+3}, v{T+1}
v_cos_f32 v{Z8}, v{T+9}
v_sin_f32 v{Z8+1}, v{T+9}
v_cos_f32 v{Z128}, v{T+11}
v_sin_f32 v{Z128+1}, v{T+11}
v_pk_mul_f32 {vr(T+6,2)}, {vr(T+6,2)}, v[8:9] op_sel_hi:[1,0]
v_pk_mul_f32 {vr(Z+2,2)}, {vr(Z+2,2)}, {vr(T,2)} op_sel_hi:[1,0]
v_pk_mul_f32 {vr(Z8,2)}, {vr(Z8,2)}, {vr(T+8,2)} op_sel_hi:[1,0] neg_hi:[1,0]
v_pk_mul_f32 {vr(Z128,2)}, {vr(Z128,2)}, {vr(T+10,2)} op_sel_hi:[1,0]""")
def cm(o, w, z): return [f"v_pk_mul_f32 {vr(o,2)}, {vr(w,2)}, {vr(z,2)} op_sel:[0,0] op_sel_hi:[0,1]",
                         f"v_pk_fma_f32 {vr(o,2)}, {vr(w,2)}, {vr(z,2)}, {vr(o,2)} op_sel:[1,1,0] op_sel_hi:[1,0,1] neg_lo:[0,1,0]"]
cv = [0]
def emit_row(src, row):
    r = 140 + (cv[0] % 4); cv[0] += 1
    return [f"v_cvt_pk_bf16_f32 v{r}, v{src}, v{src+1}", f"ds_write_addtid_b32 v{r} offset:{272*row}"]
sB = emit_row(T+6, 41)
bb = [T+6, T+12]
for j in range(1, 16):
    sB += cm(bb[j&1], bb[(j-1)&1], Z8) + emit_row(bb[j&1], 41+j)
PP = 114
def preg(a): return Z128 if a == 1 else (PP+2*(a-2) if a <= 7 else 126+2*(a&1))
def prow(a): return {1:8, 2:16, 3:20, 4:24, 5:26, 6:28, 7:30}.get(a, 32+a-8)
sP = emit_row(Z128, 8)
for a in range(2, 17):
    sP += cm(preg(a), preg(a-1), Z128) + emit_row(preg(a), prow(a))
sZ = emit_row(Z+2, 1)
for b, (p, q) in {2:(1,1), 3:(2,1), 4:(2,2), 5:(4,1), 6:(4,2), 7:(4,3)}.items():
    sZ += cm(Z+2*b, Z+2*p, Z+2*q) + emit_row(Z+2*b, b)
tq = [130, 132, 134, 136]; ti = 0
prods = [(1,b,8+b) for b in range(1,8)] + [(2,2*b,16+b) for b in (1,2,3)] + [(3,2*b,20+b) for b in (1,2,3)] + [(a,4,prow(a)+1) for a in (4,5,6,7)]
sQ = []
for a, b, row in prods:
    o = tq[(ti % 2) + (2 if ti >= 8 else 0)]; ti += 1
    sQ.append(cm(o, preg(a), Z+2*b) + emit_row(o, row))
sZ += sum(sQ[:8], [])
sR = sum(sQ[8:], [])
def retemp(stream, base):
    out = []; n = 0; cur = None
    for t in stream:
        if t.startswith("v_cvt_pk"):
            cur = base + (n & 1); n += 1
            p = t.split(); t = f"{p[0]} v{cur}, {p[2]} {p[3]}"
        elif t.startswith("ds_write_addtid"):
            p = t.split(); t = f"{p[0]} v{cur} {p[2]}"
        out.append(t)
    return out
sB = retemp(sB, 138); sP = retemp(sP, 140); sZ = retemp(sZ, 142); sR = retemp(sR, 144)
streams = [sB, sP, sZ]; pos = [0,0,0,0]; rnd = 0
while True:
    if rnd == 30: streams.append(sR)
    any_ = False
    for i, s in enumerate(streams):
        if pos[i] < len(s): A(s[pos[i]]); pos[i] += 1; any_ = True
    rnd += 1
    if not any_ and rnd > 30: break
for c in range(4):
    for t, row in ((3, 41), (0, 0), (1, 16), (2, 32)):
        A(f"ds_read_b128 {vr(AF+16*c+4*t,4)}, v9 offset:{272*row+64*c}")
A("s_mov_b32 s52, 0x03020c0c\ns_add_u32 s53, s53, 1")
for c in range(4):
    A(f"s_waitcnt lgkmcnt({12-4*c})")
    for t in range(3):
        A(f"v_mfma_f32_16x16x32_bf16 {vr(DT+4*t,4)}, {vr(AF+16*c+4*t,4)}, {vr(AF+16*c+12,4)}, {vr(DT+4*t,4)}")
A("s_cmp_lt_u32 s53, 2\ns_cbranch_scc1 KLOOP")
stamp(2)
D0, D1, D2 = DT, DT+4, DT+8
A(f"""v_lshl_add_u32 v8, v12, 4, s50
v_lshl_add_u32 v10, v13, 10, v8
v_lshl_add_u32 v11, v13, 9, v8
v_lshl_add_u32 v14, v13, 8, v8
v_lshrrev_b32 v15, 1, v13
v_lshl_add_u32 v15, v15, 8, v8
v_and_b32 v9, 1, v13
v_lshl_add_u32 v15, v9, 3, v15
v_lshl_add_u32 v9, v0, 3, s50""")
E = 100
for i in range(4):
    A(f"v_mov_b32_dpp v{E+16+i}, v{D2+i} quad_perm:[0,0,2,2] row_mask:0xf bank_mask:0xf")
for i in range(4):
    A(f"v_cvt_pk_bf16_f32 v{E+4*i}, v{E+16+i}, v{D2+i}")
    for q in range(1, 4): A(f"v_cvt_pk_bf16_f32 v{E+4*i+q}, v{D2+i}, v{D2+i}")
A("s_mov_b32 exec_hi, 1")
for i in range(4):
    A(f"ds_write_b128 v10, {vr(E+4*i,4)} offset:{KXO+2*(1024+128*i-4)}")
    if i == 0: A("s_mov_b32 exec_hi, 0")
A("s_mov_b64 exec, -1")
E2 = 120
for h in range(2):
    a, b = D1+2*h, D1+2*h+1
    A(f"""v_cvt_pk_bf16_f32 v{E2+4*h}, v{a}, v{a}
    v_cvt_pk_bf16_f32 v{E2+4*h+1}, v{a}, v{a}
    v_cvt_pk_bf16_f32 v{E2+4*h+2}, v{a}, v{b}
    v_cvt_pk_bf16_f32 v{E2+4*h+3}, v{b}, v{b}""")
A(f"""v_cvt_pk_bf16_f32 v{E2+8}, v{D1}, v{D1}
v_cvt_pk_bf16_f32 v{E2+9}, v{D1}, v{D1+1}
v_cvt_pk_bf16_f32 v{E2+10}, v{D1+2}, v{D1+2}
v_cvt_pk_bf16_f32 v{E2+11}, v{D1+2}, v{D1+3}
v_cvt_pk_bf16_f32 v{E2+12}, v{D0}, v{D0+1}
v_cvt_pk_bf16_f32 v{E2+13}, v{D0+2}, v{D0+3}
s_mov_b32 exec_lo, 0
ds_write_b128 v11, {vr(E2,4)} offset:{KXO-4}
ds_write_b128 v11, {vr(E2+4,4)} offset:{KXO-4+256}
s_mov_b32 exec_lo, -1
s_mov_b32 exec_hi, 0
ds_write_b128 v14, {vr(E2+8,4)} offset:{KXO+2*(256-1)}
s_mov_b64 exec, 31
ds_write_b64 v9, v[4:5]
s_mov_b64 exec, -1
ds_write_b64 v15, {vr(E2+12,2)} offset:{KXO}""")
A(f"""v_and_b32 v8, 3, v0
v_lshrrev_b32 v9, 2, v12
v_sub_u32 v9, v8, v9
v_lshlrev_b32 v9, 3, v9
v_lshlrev_b32 v10, 6, v13
v_sub_u32 v9, v9, v10
s_add_u32 s42, s50, {KXO+192}
v_add_u32 v9, s42, v9""")
for q in range(16):
    for h in range(2):
        A(f"ds_read_b64_tr_b16 {vr(AF+4*q+2*h,2)}, v9 offset:{256*q+32-32*h}")
A(f"""v_lshlrev_b32 v10, 3, v12
v_lshl_add_u32 v10, v13, 4, v10
s_add_u32 s42, s51, 8
v_add_u32 v10, s42, v10
v_mul_u32_u24 v11, {UPH}, v8
v_lshl_add_u32 v11, v13, 4, v11
s_add_u32 s42, s51, 128
v_add_u32 v11, s42, v11
v_mul_u32_u24 v14, 272, v12
v_lshl_add_u32 v14, v13, 6, v14
s_lshl_b32 s42, s7, 2
s_add_u32 s42, s42, {Y0}
v_add_u32 v14, s42, v14
v_cmp_eq_u32 vcc, 3, v13
v_mov_b32 v15, 64
v_mov_b32 v9, 80
v_cndmask_b32 v15, v15, v9, vcc
v_add_u32 v15, v15, v14
v_subrev_u32 v9, 61, v0
v_lshl_add_u32 v9, v9, 4, s42""")
A("s_waitcnt vmcnt(0)")
signal(C_W, vM, vOne)
stamp(3)
spin(C_U, 4, vM, vT)
stamp(4)
A("s_setprio 1\ns_cmp_eq_u32 s5, 1\ns_cbranch_scc1 CONV1")

def conv(blocks, yoff, nbx, xloc, xpos):
    items = []
    emax = 2*max(blocks)
    for e in range(-1, emax+1):
        for rho in range(4):
            ms = [(ACC+16*i+4*rho, 2*nb-e, e == -1) for i, nb in reversed(list(enumerate(blocks))) if e <= 2*nb]
            done = [i for i, nb in enumerate(blocks) if e == 2*nb and rho == 3]
            items.append(dict(kind="b", off=rho*UPH+64*(e+1), ms=ms, done=done))
    xi = [dict(kind="x", off=64*t, ms=[(XT, 2*nbx-1-t, t == 0)], done=(["x"] if t == 2*nbx-1 else [])) for t in range(2*nbx)]
    out = items[:xpos]; rest = items[xpos:]
    while xi or rest:
        if xi: out.append(xi.pop(0))
        if rest: out.append(rest.pop(0))
    items = out
    fifo = []
    def ds(text, tag=None):
        A(text); fifo.append(tag)
    def loads(n):
        it = items[n]; b = BB + 4*(n % 8)
        if it["kind"] == "b":
            return [(f"ds_read_b64 {vr(b,2)}, v10 offset:{it['off']}", n), (f"ds_read_b64 {vr(b+2,2)}, v10 offset:{it['off']+8}", n)]
        return [(f"ds_read_b128 {vr(b,4)}, v11 offset:{it['off']}", n)]
    def finish(i):
        if i == "x":
            return [f"v_add_f32_dpp v{XT+3}, v{XT+2}, v{XT+3} row_shl:1 row_mask:0xf bank_mask:0xf bound_ctrl:0",
                    f"v_add_f32_dpp v{XT+3}, v{XT+1}, v{XT+3} row_shl:2 row_mask:0xf bank_mask:0xf bound_ctrl:0",
                    f"s_mov_b32 exec_lo, 0|s_mov_b32 exec_hi, 0xe0000000|ds_add_f32 v9, v{XT+3} offset:{yoff[xloc]}|s_mov_b64 exec, -1"]
        d = [ACC+16*i+4*r for r in range(4)]
        o = yoff[i]
        return [f"ds_add_f32 v14, v{d[0]} offset:{o}",
                f"v_add_f32 v{d[0]+1}, v{d[0]+1}, v{d[1]}",
                f"v_add_f32 v{d[0]+2}, v{d[0]+2}, v{d[1]+1}",
                f"v_add_f32 v{d[0]+3}, v{d[0]+3}, v{d[1]+2}",
                f"v_add_f32 v{d[1]+3}, v{d[1]+3}, v{d[2]+2}",
                f"ds_add_f32 v14, v{d[0]+1} offset:{o+16}",
                f"v_add_f32 v{d[0]+2}, v{d[0]+2}, v{d[2]}",
                f"v_add_f32 v{d[0]+3}, v{d[0]+3}, v{d[2]+1}",
                f"ds_add_f32 v14, v{d[0]+2} offset:{o+32}",
                f"v_add_f32 v{d[0]+3}, v{d[0]+3}, v{d[3]}",
                f"v_add_f32 v{d[1]+3}, v{d[1]+3}, v{d[3]+1}",
                f"v_add_f32 v{d[2]+3}, v{d[2]+3}, v{d[3]+2}",
                f"ds_add_f32 v15, v{d[3]+3} offset:{o+32}",
                f"ds_add_f32 v14, v{d[0]+3} offset:{o+48}",
                f"ds_add_f32 v15, v{d[1]+3} offset:{o}",
                f"ds_add_f32 v15, v{d[2]+3} offset:{o+16}",
                f"s_mov_b64 exec, 1|ds_add_u32 v{vM}, v{vOne} offset:{C_Y+4*i}|s_mov_b64 exec, -1"]
    DEPTH = 6
    lq = []; nl = 0; fq = []
    def emit_f(t):
        for p in t.split("|"):
            if p.startswith("ds_"): ds(p)
            else: A(p)
    for n in range(min(DEPTH, len(items))):
        for t, tag in loads(n): ds(t, tag)
    nl = min(DEPTH, len(items)); mc = 0
    for n, it in enumerate(items):
        while lq and lq[0][1] <= n: ds(*lq.pop(0))
        last = max(k for k, t in enumerate(fifo) if t == n)
        w = len(fifo) - 1 - last
        A(f"s_waitcnt lgkmcnt({min(w,15)})")
        del fifo[:last+1]
        if nl < len(items) and nl <= n + DEPTH: lq += loads(nl); nl += 1
        b = BB + 4*(n % 8)
        for acc, q, first in it["ms"]:
            A(f"v_mfma_f32_16x16x32_bf16 {vr(acc,4)}, {vr(AF+4*q,4)}, {vr(b,4)}, " + ("0" if first else vr(acc,4)))
            mc += 1
            for _ in range(2):
                if lq: ds(*lq.pop(0))
                elif fq and fq[0][0] <= mc: emit_f(fq.pop(0)[1])
        for i in it["done"]:
            fq += [(mc+3, t) for t in finish(i)]
    for _, t in fq: emit_f(t)
conv([0,1,6,7], [0, YBLK, 2*YBLK+272, 3*YBLK+272], 6, 2, 16)
stamp(5)
stamp_flush()
A("s_endpgm")
A.lab("CONV1")
conv([2,3,4,5], [0, YBLK, 2*YBLK, 3*YBLK], 2, 0, 2)
stamp(5)
stamp_flush()
A.lab("END")
A("s_endpgm")

n = A.fix(verbose=bool(OPT.get("v", 0)))
hdr = open("recurrent_scan__ssm_conv_s4__moe_arch_mod__prompt.s.ref").read().split("; Override launch")[0]
out = hdr + f"""; @launch grid=(256,1,1) block=(512,1,1) lds={LDS_TOTAL}
.amdgcn_target "amdgcn-amd-amdhsa--gfx950"
.text
.globl {NAME}
.p2align 8
.type {NAME},@function
{NAME}:
""" + A.text() + f""".section .rodata,"a"
.p2align 6
.amdhsa_kernel {NAME}
  .amdhsa_next_free_vgpr 256
  .amdhsa_next_free_sgpr 102
  .amdhsa_accum_offset 256
  .amdhsa_group_segment_fixed_size 0
  .amdhsa_kernarg_size 136
  .amdhsa_user_sgpr_count 2
  .amdhsa_user_sgpr_kernarg_segment_ptr 1
  .amdhsa_system_sgpr_workgroup_id_x 1
.end_amdhsa_kernel
"""
open(sys.argv[1], "w").write(out)
print("nops inserted", n, "lines", len(A.L), "lds", LDS_TOTAL)
```

```python
import sys, os
sys.path.insert(0, os.path.dirname(__file__))
from asmlib import Asm
NAME = "recurrent_scan__ssm_conv_s4__moe_arch_mod__prompt_kernel"
OPT = dict(stamps=0, dbg=0)
for a in sys.argv[2:]:
    k, v = a.split("="); OPT[k] = int(v, 0)
STAMPS = OPT["stamps"]

KEYS = 0x400000; EPOCH = 0x408000; PART = 0x410000; STAMPW = 0x800000
STG = 15504
U0 = 4*STG; UPH = 1184; UCH = 4*UPH
Y0 = U0 + 4*UCH; YBLK = 4352
MISC = Y0 + 4*YBLK + 544
C_U, C_Y, C_ST, C_W, C_F, SEL = 0, 4, 20, 24, 28, 32
XCH = MISC + 64; FRED = XCH + 512
W0 = Y0 + 20480; WU = W0 + 16384; WD = W0 + 32768; WDS = 1056
LDS_TOTAL = WD + 16*WDS
CAR = 4368
KXO = 40
LOG2E = "0x3fb8aa3b"; NLOG2E = "0xbfb8aa3b"; INV2PI = "0x3e22f983"
TIMEOUT = 20000

A = Asm()
def vr(b, n): return f"v[{b}:{b+n-1}]"
def sr(b, n=2): return f"s[{b}:{b+n-1}]"
nstamp = [0]
def stamp(i):
    if STAMPS: A(f"s_memrealtime s[{64+2*i}:{65+2*i}]")
def stamp_flush():
    if not STAMPS: return
    A(f"""s_lshl_b32 s60, s2, 3
    s_add_u32 s60, s60, s3
    s_lshl_b32 s60, s60, 7
    s_add_u32 s60, s60, {STAMPW}
    v_mov_b32 v1, s60
    s_mov_b64 exec, 1
    s_waitcnt lgkmcnt(0)""")
    for i in range(16):
        A(f"v_mov_b32 v2, s{64+2*i}\nv_mov_b32 v3, s{65+2*i}\nglobal_store_dwordx2 v1, v[2:3], s[40:41] offset:{8*i}")

def signal(off, vM, vOne):
    A(f"s_mov_b64 exec, 1\nds_add_u32 v{vM}, v{vOne} offset:{off}\ns_mov_b64 exec, -1")
def spin(off, target, vM, vT, extra="", nonzero=False):
    l = A.newlab("SPIN"); d = A.newlab("SPD")
    A(f"s_mov_b32 s59, 0")
    A.lab(l)
    A(f"ds_read_b32 v{vT}, v{vM} offset:{off}")
    if extra: A(extra)
    A(f"""s_add_u32 s59, s59, 1
    s_cmp_gt_u32 s59, {TIMEOUT*16}
    s_cbranch_scc1 {d}
    s_waitcnt lgkmcnt(0)
    v_readfirstlane_b32 s58, v{vT}""")
    A(f"s_cmp_eq_u32 s58, 0" if nonzero else f"s_cmp_lt_u32 s58, {target}")
    A(f"s_cbranch_scc1 {l}")
    A.lab(d)
    A("s_waitcnt lgkmcnt(0)")

A(f"""s_cmp_ge_u32 s2, 256
s_cbranch_scc1 END
s_load_dwordx16 s[8:23], s[0:1], 0
s_load_dwordx16 s[24:39], s[0:1], 64
s_load_dwordx2 s[40:41], s[0:1], 128""")
if STAMPS:
    for i in range(16): A(f"s_mov_b64 s[{64+2*i}:{65+2*i}], 0")
stamp(0)
A(f"""v_lshrrev_b32 v1, 6, v0
v_and_b32 v0, 63, v0
v_readfirstlane_b32 s3, v1
s_and_b32 s42, s2, 7
s_lshr_b32 s43, s2, 3
s_and_b32 s44, s43, 15
s_lshr_b32 s5, s43, 4
s_lshl_b32 s4, s42, 4
s_add_u32 s4, s4, s44
s_mul_i32 s6, s42, 11
s_add_u32 s6, s6, s44
s_cmp_lt_u32 s44, 11
s_cselect_b32 s6, s6, 999
s_cmp_eq_u32 s5, 1
s_cselect_b32 s6, s6, 999
s_and_b32 s7, s3, 3
s_mov_b32 s56, 0xffff0000
s_cmp_lt_u32 s3, 4
s_cbranch_scc1 KWAVE""")

vM, vOne, vT = 1, 2, 3
XA, XB, WR = 16, 24, 32
A(f"""s_setprio 2
s_lshr_b32 s42, s2, 2
s_lshl_b32 s42, s42, 5
s_and_b32 s43, s2, 3
s_lshl_b32 s43, s43, 2
s_add_u32 s42, s42, s43
v_and_b32 v4, 4, v0
v_and_b32 v5, 3, v0
v_lshl_or_b32 v4, v4, 2, v5
v_add_u32 v6, s42, v4
v_lshrrev_b32 v7, 3, v0
s_lshl_b32 s43, s7, 8
v_lshl_add_u32 v8, v7, 4, s43
v_lshl_add_u32 v9, v6, 10, v8
v_mov_b32 v10, {EPOCH}
s_waitcnt lgkmcnt(0)
global_load_dwordx4 {vr(XA,4)}, v9, s[8:9]
global_load_dwordx4 {vr(XB,4)}, v9, s[8:9] offset:128
global_load_dwordx4 {vr(WR,4)}, v8, s[28:29]
global_load_dwordx4 {vr(WR+4,4)}, v8, s[28:29] offset:128
global_load_dword v11, v10, s[40:41] sc1
s_lshl_b32 s44, s4, 3
s_load_dwordx2 s[54:55], s[24:25], s44
s_barrier""")
A(f"""v_mov_b32 v{vM}, {MISC}
v_mov_b32 v{vOne}, 1
v_and_b32 v12, 7, v0
v_lshrrev_b32 v13, 4, v0
s_lshl_b32 s43, s7, 2
s_add_u32 s43, s43, {XCH}
v_lshl_add_u32 v13, v13, 4, s43
v_lshl_add_u32 v13, v12, 6, v13
v_lshlrev_b32 v14, 6, v12
v_add_u32 v14, {XCH}, v14
s_lshl_b32 s43, s7, 20
s_lshl_b32 s44, s2, 7
s_add_u32 s43, s43, s44
v_lshl_add_u32 v15, v7, 16, s43
v_lshl_add_u32 v15, v12, 4, v15
s_add_u32 s44, s40, 32768
s_addc_u32 s45, s41, 0
s_add_u32 s46, s40, 524288
s_addc_u32 s47, s41, 0
s_add_u32 s48, s40, 557056
s_addc_u32 s49, s41, 0
s_mov_b32 s57, 0x3f803f80""")
def dma_gu(i):
    A(f"""s_add_u32 s42, s6, {i}
    s_and_b32 s42, s42, 3
    s_mul_i32 s43, s42, {32*2752}
    s_lshl_b32 s42, s42, 10
    s_add_u32 s42, s42, s61
    v_add_u32 v61, s43, v240
    s_mov_b32 m0, s42
    s_add_u32 s42, s42, 16384
    global_load_lds_dwordx4 v61, s[30:31]
    s_mov_b32 m0, s42
    s_nop 0
    global_load_lds_dwordx4 v61, s[32:33]""")
A(f"""s_cmp_gt_u32 s6, 85
s_cbranch_scc1 NODMA1
v_lshrrev_b32 v60, 1, v0
s_lshl_b32 s43, s7, 7
v_add_u32 v60, s43, v60
v_mul_u32_u24 v60, 2752, v60
v_and_b32 v61, 1, v0
v_lshl_add_u32 v60, v61, 4, v60
s_lshl_b32 s43, s6, 5
v_add_u32 v240, s43, v60
s_lshl_b32 s61, s7, 12
s_add_u32 s61, s61, {W0}""")
dma_gu(0)
A(f"""s_lshl_b32 s43, s6, 14
s_lshl_b32 s42, s7, 8
s_add_u32 s43, s43, s42
v_lshrrev_b32 v61, 4, v0
v_lshl_add_u32 v61, v61, 10, s43
v_and_b32 v62, 15, v0
v_lshl_add_u32 v61, v62, 4, v61
s_mul_i32 s42, s7, {4*WDS}
s_add_u32 s42, s42, {WD}""")
for i in range(4):
    A(f"""s_mov_b32 m0, s42
    s_add_u32 s42, s42, {WDS}
    global_load_lds_dwordx4 v61, s[34:35]""")
    if i < 3: A("v_add_u32 v61, 4096, v61")
A("s_waitcnt vmcnt(6)\ns_branch XW1\nNODMA1:\ns_waitcnt vmcnt(0)\nXW1:")
stamp(1)
xs = [XA+i for i in range(4)] + [XB+i for i in range(4)]
for i in range(8):
    c = lambda r: "0" if i == 0 else f"v{r}"
    A(f"""v_dot2_f32_bf16 v40, v{xs[i]}, s57, {c(40)}
    v_dot2_f32_bf16 v41, v{xs[i]}, v{xs[i]}, {c(41)}
    v_dot2_f32_bf16 v42, v{xs[i]}, v{WR+i}, {c(42)}
    v_dot2_f32_bf16 v43, v{WR+i}, s57, {c(43)}""")
A(f"""v_mov_b32 v{XA+4}, v{XA+2}
v_mov_b32 v{XA+5}, v{XA+3}
v_permlane32_swap_b32 v40, v41
v_mov_b32 v{XB+4}, v{XB+2}
v_permlane32_swap_b32 v42, v43
v_add_f32 v40, v40, v41
v_add_f32 v42, v42, v43
v_mov_b32 v{XB+5}, v{XB+3}
v_permlane16_swap_b32 v40, v42
v_add_f32 v40, v40, v42
v_add_u32 v11, 1, v11
v_add_f32_dpp v40, v40, v40 row_ror:8 row_mask:0xf bank_mask:0xf
ds_write_b32 v13, v40""")
signal(C_ST, vM, vOne)
A(f"""v_mov_b32 v{XA+3}, v11
v_mov_b32 v{XA+7}, v11
v_mov_b32 v{XB+3}, v11
v_mov_b32 v{XB+7}, v11
v_readfirstlane_b32 s50, v11""")
spin(C_ST, 4, vM, vT, extra="\n".join(f"ds_read_b128 {vr(44+4*q,4)}, v14 offset:{16*q}" for q in range(4)))
for q in (0, 2, 1, 3):
    A(f"v_pk_add_f32 {vr(44+4*q,2)}, {vr(44+4*q,2)}, {vr(46+4*q,2)}")
A(f"""v_add_f32 v44, v44, v45
v_add_f32 v52, v52, v53
v_mul_f32 v44, 0x3b000000, v44
v_mul_f32 v52, 0x3b000000, v52
v_fma_f32 v52, -v44, v44, v52
v_max_f32 v52, 0, v52
v_cvt_pk_bf16_f32 v52, v52, v52
v_and_b32 v52, s56, v52
v_add_f32 v52, 0x3727c5ac, v52
v_cvt_pk_bf16_f32 v52, v52, v52
v_and_b32 v52, s56, v52
v_sqrt_f32 v52, v52
v_add_f32 v48, v48, v49
v_cvt_pk_bf16_f32 v{XA+2}, v44, v52
v_cvt_pk_bf16_f32 v{XA+6}, v44, v52
global_store_dwordx4 v15, {vr(XA,4)}, s[40:41] sc1
v_cvt_pk_bf16_f32 v{XB+2}, v44, v52
global_store_dwordx4 v15, {vr(XA+4,4)}, s[44:45] sc1
v_cvt_pk_bf16_f32 v{XB+6}, v44, v52
global_store_dwordx4 v15, {vr(XB,4)}, s[46:47] sc1
global_store_dwordx4 v15, {vr(XB+4,4)}, s[48:49] sc1""")
stamp(2)
A(f"""s_cmp_lg_u32 s7, 3
s_cbranch_scc1 NOKEYST
v_and_b32 v45, s56, v{XA+2}
v_lshlrev_b32 v46, 16, v{XA+2}
v_rcp_f32 v45, v45
v_add_f32 v56, v56, v57
v_fma_f32 v48, -v46, v56, v48
v_mul_f32 v48, v48, v45
v_cvt_pk_bf16_f32 v48, v48, v48
v_ashrrev_i32 v49, 31, v48
v_or_b32 v49, 0x80000000, v49
v_xor_b32 v48, v48, v49
v_lshlrev_b32 v49, 1, v6
v_or_b32 v49, 0x8000, v49
v_and_or_b32 v60, v48, s56, v49
v_max_u32_dpp v50, v60, v60 quad_perm:[1,0,3,2] row_mask:0xf bank_mask:0xf
v_max_u32_dpp v50, v50, v50 quad_perm:[2,3,0,1] row_mask:0xf bank_mask:0xf
v_max_u32_dpp v50, v50, v50 row_half_mirror row_mask:0xf bank_mask:0xf
v_cmp_ne_u32 vcc, v60, v50
v_cndmask_b32 v51, 0, v60, vcc
v_cndmask_b32 v53, 0, v{vOne}, vcc
v_max_u32_dpp v51, v51, v51 quad_perm:[1,0,3,2] row_mask:0xf bank_mask:0xf
v_max_u32_dpp v51, v51, v51 quad_perm:[2,3,0,1] row_mask:0xf bank_mask:0xf
v_max_u32_dpp v51, v51, v51 row_half_mirror row_mask:0xf bank_mask:0xf
s_lshl_b32 s43, s2, 5
s_add_u32 s43, s43, {KEYS}
v_cmp_ge_u32 vcc, v60, v51
v_or_b32 v60, v60, v53
v_mov_b32 v61, v{XA+2}
v_mov_b32 v62, v11
v_mov_b32 v63, 0
v_lshl_add_u32 v53, v53, 4, s43
s_and_b64 exec, vcc, 0xff
global_store_dwordx4 v53, v[60:63], s[40:41] sc1
s_mov_b64 exec, -1
NOKEYST:""")
GA, GB, KV = 64, 80, 96
A(f"""s_add_u32 s42, s7, 2
s_add_u32 s43, s7, 4
s_cmp_lt_u32 s7, 2
s_cselect_b32 s43, s7, s43
s_cselect_b32 s52, s7, 99
s_cmp_eq_u32 s5, 0
s_cselect_b32 s51, s43, s42
s_cselect_b32 s52, s42, s52
s_lshl_b32 s42, s4, 15
s_lshl_b32 s43, s51, 12
s_add_u32 s43, s43, s42
s_add_u32 s44, s40, s43
s_addc_u32 s45, s41, 0
s_and_b32 s43, s52, 7
s_lshl_b32 s43, s43, 12
s_add_u32 s43, s43, s42
s_add_u32 s46, s40, s43
s_addc_u32 s47, s41, 0
v_lshlrev_b32 v8, 9, v7
v_lshl_add_u32 v8, v12, 4, v8
v_mul_u32_u24 v9, {UPH}, v5
v_lshl_add_u32 v9, v7, 4, v9
v_and_b32 v10, 4, v0
v_lshl_add_u32 v9, v10, 1, v9
s_lshl_b32 s42, s51, 7
s_add_u32 s42, s42, {U0+128}
v_add_u32 v10, s42, v9
s_lshl_b32 s42, s52, 7
s_add_u32 s42, s42, {U0+128}
v_add_u32 v9, s42, v9
s_lshl_b32 s53, s5, 2
s_or_b32 s53, s53, s7
s_mov_b32 s59, 0""")
for k in range(4): A(f"v_mov_b32 v{GB+4*k+3}, v11")
A("s_cmp_gt_u32 s6, 85\ns_cbranch_scc1 NODMA2")
for i in range(1, 4): dma_gu(i)
A("s_waitcnt vmcnt(6)\ns_branch DR1\nNODMA2:\ns_waitcnt vmcnt(0)\nDR1:")
stamp(3)
A.lab("SWL")
for k in range(4): A(f"global_load_dwordx4 {vr(GA+4*k,4)}, v8, s[44:45] offset:{128*k} sc1")
A("s_cmp_gt_u32 s52, 7\ns_cbranch_scc1 SWNB")
for k in range(4): A(f"global_load_dwordx4 {vr(GB+4*k,4)}, v8, s[46:47] offset:{128*k} sc1")
A.lab("SWNB")
A("s_cmp_eq_u32 s53, 7\ns_cbranch_scc1 KEYSR")
A.lab("SWC")
A(f"""s_add_u32 s59, s59, 1
s_waitcnt vmcnt(0)
v_min3_u32 v16, v{GA+3}, v{GA+7}, v{GA+11}
v_max3_u32 v17, v{GA+3}, v{GA+7}, v{GA+11}
v_min3_u32 v16, v16, v{GA+15}, v{GB+3}
v_max3_u32 v17, v17, v{GA+15}, v{GB+3}
v_min3_u32 v16, v16, v{GB+7}, v{GB+11}
v_max3_u32 v17, v17, v{GB+7}, v{GB+11}
v_min3_u32 v16, v16, v{GB+15}, v11
v_max3_u32 v17, v17, v{GB+15}, v11
s_cmp_gt_u32 s59, {TIMEOUT}
v_cmp_ne_u32 vcc, v16, v17
s_cbranch_scc1 SWD
s_and_b64 exec, exec, vcc
s_cbranch_execnz SWL
SWD:
s_mov_b64 exec, -1""")
stamp(4)
R_, N_, X_, XN_, P_ = 16, 20, 24, 40, 56
def norm(G, va):
    for k in range(4): A(f"v_and_b32 v{R_+k}, s56, v{G+4*k+2}")
    for k in range(4): A(f"v_rcp_f32 v{R_+k}, v{R_+k}\nv_lshlrev_b32 v{N_+k}, 16, v{G+4*k+2}")
    for k in range(4): A(f"v_lshlrev_b32 v{X_+k}, 16, v{G+4*k}")
    for h in range(2): A(f"v_pk_mul_f32 {vr(N_+2*h,2)}, {vr(N_+2*h,2)}, {vr(R_+2*h,2)} neg_lo:[1,0] neg_hi:[1,0]")
    for j in range(4):
        if j < 3:
            jj = j+1
            for k in range(4):
                if jj & 1: A(f"v_and_b32 v{X_+4*jj+k}, s56, v{G+4*k+(jj>>1)}")
                else: A(f"v_lshlrev_b32 v{X_+4*jj+k}, 16, v{G+4*k+(jj>>1)}")
        for h in range(2): A(f"v_pk_fma_f32 {vr(XN_+4*j+2*h,2)}, {vr(X_+4*j+2*h,2)}, {vr(R_+2*h,2)}, {vr(N_+2*h,2)}")
        for h in range(2): A(f"v_cvt_pk_bf16_f32 v{P_+2*j+h}, v{XN_+4*j+2*h}, v{XN_+4*j+2*h+1}")
        A(f"ds_write_b64 v{va}, {vr(P_+2*j,2)} offset:{j*UCH}")
A("s_cmp_gt_u32 s52, 7\ns_cbranch_scc1 NONB")
norm(GB, 9)
A.lab("NONB")
norm(GA, 10)
signal(C_U, vM, vOne)
stamp(5)
A("s_setprio 0\ns_cmp_eq_u32 s53, 3\ns_cbranch_scc1 KEYSR")
A.lab("AFTK")

FA, FD, FB, FDG = 128, 160, 176, 192
A(f"""v_and_b32 v12, 15, v0
v_lshrrev_b32 v13, 4, v0
s_cmp_gt_u32 s6, 85
s_cbranch_scc1 NOF1""")
A(f"""v_lshrrev_b32 v14, 2, v12
s_mov_b32 s57, {WDS}
s_lshl_b32 s42, s7, 12
s_add_u32 s42, s42, {W0}
v_lshl_add_u32 v15, v13, 8, s42
v_lshl_add_u32 v15, v14, 5, v15
v_lshl_add_u32 v15, v5, 3, v15
v_lshlrev_b32 v14, 8, v14
v_mad_u32_u24 v14, v13, s57, v14
s_mul_i32 s42, s7, {4*WDS}
s_add_u32 s42, s42, {WD}
v_add_u32 v14, s42, v14
v_lshl_add_u32 v14, v5, 3, v14""")
A.lab("NOF1")
spin(SEL+4, 0, vM, vT, extra=f"ds_read_b32 v8, v{vM} offset:{SEL}", nonzero=True)
A(f"""v_readfirstlane_b32 s60, v8
s_mov_b32 s61, s58
s_bfe_u32 s62, s60, 0xb0001
s_bfe_u32 s63, s61, 0xb0001""")
stamp(6)
A(f"""s_cmp_gt_u32 s6, 85
s_cbranch_scc1 NOF2
s_setprio 2
v_and_b32 v8, 1, v0
v_mov_b32 v9, s60
v_mov_b32 v10, s61
v_cmp_eq_u32 vcc, 1, v8
v_cndmask_b32 v9, v9, v10, vcc
v_bfe_u32 v10, v9, 1, 11
v_lshrrev_b32 v8, 2, v12
v_lshlrev_b32 v8, 6, v8
v_lshl_add_u32 v8, v13, 4, v8
v_and_b32 v16, 2, v0
v_lshl_add_u32 v8, v16, 2, v8
s_lshl_b32 s42, s7, 8
v_lshl_add_u32 v16, v10, 10, s42
v_add_u32 v8, v8, v16
global_load_dwordx2 v[200:201], v8, s[8:9]
v_lshrrev_b32 v16, 5, v10
v_bfe_u32 v17, v10, 2, 2
v_lshl_add_u32 v16, v16, 2, v17
v_and_b32 v17, 1, v9
v_lshl_add_u32 v16, v16, 1, v17
v_lshlrev_b32 v16, 4, v16
v_add_u32 v16, {KEYS+4}, v16
global_load_dword v202, v16, s[40:41] sc1""")
rd = ""
for m in range(2):
    for c in range(4):
        for h in range(2):
            rd += f"ds_read_b64_tr_b16 {vr(FA+16*m+4*c+2*h,2)}, v15 offset:{m*16384+c*1024+128*h}\n"
for c in range(4):
    for t in range(2):
        rd += f"ds_read_b64_tr_b16 {vr(FD+4*c+2*t,2)}, v14 offset:{64*c+32*t}\n"
A(rd)
A.lab("NOF2")

GG, CC, YY = 64, 80, 96
A(f"""s_lshl_b32 s44, s54, 16
s_and_b32 s45, s54, s56
s_lshl_b32 s46, s55, 16
s_and_b32 s47, s55, s56""")
def precompute():
    for j in range(4):
        for k in range(4): A(f"v_mul_f32 v{16+k}, {NLOG2E}, v{XN_+4*j+k}")
        for k in range(4): A(f"v_exp_f32 v{16+k}, v{16+k}")
        for k in range(4): A(f"v_mul_f32 v{20+k}, s{44+j}, v{XN_+4*j+k}")
        for k in range(4): A(f"v_add_f32 v{16+k}, 1.0, v{16+k}")
        for k in range(4): A(f"v_rcp_f32 v{16+k}, v{16+k}")
        for k in range(4): A(f"v_mul_f32 v{GG+4*k+j}, v{16+k}, v{XN_+4*j+k}")
        for k in range(4): A(f"v_fma_f32 v{CC+4*k+j}, v{20+k}, v{GG+4*k+j}, v{X_+4*j+k}")
A(f"""s_cmp_gt_u32 s6, 85
s_cbranch_scc1 NOF3""")
for i in range(16): A(f"v_mov_b32 v{208+i}, 0")
A(f"""v_lshl_add_u32 v8, v13, 1, v12
v_lshlrev_b32 v8, 4, v8
s_lshl_b32 s42, s7, 8
s_add_u32 s42, s42, {FRED}
v_add_u32 v8, s42, v8
v_and_b32 v9, 1, v0
v_lshl_add_u32 v9, v13, 1, v9
v_lshlrev_b32 v9, 4, v9
v_bfe_u32 v10, v0, 1, 2
v_lshl_add_u32 v9, v10, 2, v9
v_add_u32 v9, {FRED}, v9
v_bfe_i32 v10, v0, 1, 1
v_lshrrev_b32 v16, 1, v12
v_lshl_add_u32 v16, v16, 2, v13
v_lshlrev_b32 v16, 4, v16
v_and_b32 v17, 1, v0
v_lshl_add_u32 v16, v17, 11, v16
s_lshl_b32 s42, s6, 12
s_lshl_b32 s43, s7, 9
s_add_u32 s42, s42, s43
s_add_u32 s42, s42, {PART}
v_add_u32 v16, s42, v16
s_waitcnt vmcnt(0)""")
stamp(7)
A(f"""v_and_b32 v203, s56, v202
v_lshlrev_b32 v202, 16, v202
v_rcp_f32 v203, v203
v_lshlrev_b32 v204, 16, v200
v_and_b32 v205, s56, v200
v_lshlrev_b32 v206, 16, v201
v_and_b32 v207, s56, v201
v_pk_add_f32 v[204:205], v[204:205], v[202:203] op_sel_hi:[1,0] neg_lo:[0,1] neg_hi:[0,1]
v_pk_add_f32 v[206:207], v[206:207], v[202:203] op_sel_hi:[1,0] neg_lo:[0,1] neg_hi:[0,1]
v_cvt_pk_bf16_f32 v200, v204, v205
v_cvt_pk_bf16_f32 v201, v206, v207
v_lshlrev_b32 v204, 16, v200
v_and_b32 v205, s56, v200
v_lshlrev_b32 v206, 16, v201
v_and_b32 v207, s56, v201
v_pk_mul_f32 v[204:205], v[202:203], v[204:205] op_sel:[1,0] op_sel_hi:[1,1]
v_pk_mul_f32 v[206:207], v[202:203], v[206:207] op_sel:[1,0] op_sel_hi:[1,1]
v_cvt_pk_bf16_f32 v{FB}, v204, v205
v_cvt_pk_bf16_f32 v{FB+1}, v206, v207""")
for s in range(1, 8):
    for h in range(2):
        A(f"v_mov_b32_dpp v{FB+2*s+h}, v{FB+h} row_shl:{2*s} row_mask:0xf bank_mask:0xf bound_ctrl:0")
A("s_waitcnt lgkmcnt(0)")
for c in range(4):
    for m in range(2):
        A(f"v_mfma_f32_16x16x32_bf16 {vr(FDG+4*m,4)}, {vr(FA+16*m+4*c,4)}, {vr(FB+4*c,4)}, " + ("0" if c == 0 else vr(FDG+4*m,4)))
A(f"""s_mov_b32 s42, 0x00030003
s_mov_b32 s43, 0x00030003
s_mov_b64 exec, s[42:43]
ds_write_b128 v8, {vr(FDG,4)}
ds_write_b128 v8, {vr(FDG+4,4)} offset:128""")
signal(C_F, vM, vOne)
if OPT["dbg"]:
    A(f"""s_lshl_b32 s42, s6, 2
    s_add_u32 s42, s42, s7
    s_lshl_b32 s42, s42, 14
    s_add_u32 s42, s42, 0x900000
    v_lshl_add_u32 v230, v0, 2, s42""")
    regs = list(range(FA, FA+32)) + list(range(FB, FB+16)) + list(range(FDG, FDG+8))
    for i, r in enumerate(regs):
        A(f"global_store_dword v230, v{r}, s[40:41] offset:{256*(i%16)}")
        if i % 16 == 15: A("v_add_u32 v230, 4096, v230")
    A("s_waitcnt vmcnt(0)")
spin(C_F, 4, vM, vT, extra="\n".join(f"ds_read_b32 v{FB+2*w+m}, v9 offset:{256*w+128*m}" for w in range(4) for m in range(2)))
if OPT["dbg"]:
    for i in range(8): A(f"global_store_dword v230, v{FB+i}, s[40:41] offset:{256*(8+i)}")
    A("s_waitcnt vmcnt(0)")
A(f"""v_pk_add_f32 {vr(FB,2)}, {vr(FB,2)}, {vr(FB+2,2)}
v_pk_add_f32 {vr(FB+4,2)}, {vr(FB+4,2)}, {vr(FB+6,2)}
v_pk_add_f32 {vr(FB,2)}, {vr(FB,2)}, {vr(FB+4,2)}
v_cvt_pk_bf16_f32 v{FB}, v{FB}, v{FB+1}
v_lshlrev_b32 v{FB+1}, 16, v{FB}
v_mul_f32 v{FB+2}, {NLOG2E}, v{FB+1}
v_exp_f32 v{FB+2}, v{FB+2}
v_and_b32 v{FB}, s56, v{FB}
v_add_f32 v{FB+2}, 1.0, v{FB+2}
v_rcp_f32 v{FB+2}, v{FB+2}
v_mul_f32 v{FB+1}, v{FB+1}, v{FB+2}
v_cvt_pk_bf16_f32 v{FB+1}, v{FB+1}, v{FB+1}
v_and_b32 v{FB+1}, s56, v{FB+1}
v_mul_f32 v{FB}, v{FB}, v{FB+1}
v_mov_b32_dpp v{FB+1}, v{FB} quad_perm:[0,1,0,1] row_mask:0xf bank_mask:0xf
v_mov_b32_dpp v{FB+2}, v{FB} quad_perm:[2,3,2,3] row_mask:0xf bank_mask:0xf
v_cvt_pk_bf16_f32 v{FB}, v{FB+1}, v{FB+2}
v_and_b32 v{FB+1}, v10, v{FB}
v_bfi_b32 v{FB}, v10, 0, v{FB}""")
for c in range(4):
    for t in range(2):
        for i1 in range(2):
            own = (c & 1) == i1
            A(f"v_mov_b32_dpp v{208+4*c+2*t+i1}, v{FB+t} " + ("quad_perm:[0,1,2,3]" if own else "row_ror:4") + f" row_mask:0xf bank_mask:{hex(1<<c)}")
for c in range(4):
    A(f"v_mfma_f32_16x16x32_bf16 {vr(FDG,4)}, {vr(FD+4*c,4)}, {vr(208+4*c,4)}, " + ("0" if c == 0 else vr(FDG,4)))
for i in range(4): A(f"s_mov_b32 s{96+i}, {hex(0x07060500+i)}")
for i in range(4): A(f"v_perm_b32 v{FDG+i}, v{FDG+i}, v11, s{96+i}")
A(f"global_store_dwordx4 v16, {vr(FDG,4)}, s[40:41] sc1\ns_setprio 0")
stamp(8)
A.lab("NOF3")
precompute()
A(f"""s_lshl_b32 s42, s51, 8
v_lshl_add_u32 v8, v7, 5, v4
v_add_u32 v8, s42, v8""")
for k in range(4):
    A(f"""v_add_u32 v9, {4*k}, v8
    v_cmp_ne_u32 vcc, s62, v9
    v_cmp_ne_u32 {sr(96)}, s63, v9
    s_and_b64 {sr(44+2*k) if k < 3 else sr(98)}, vcc, {sr(96)}""")
A(f"""s_lshl_b32 s42, s4, 3
s_add_u32 s42, s42, 4096
v_lshl_add_u32 v8, v8, 10, s42
v_add_u32 v9, 8192, v8
v_lshrrev_b32 v10, 2, v0
v_mul_u32_u24 v10, 272, v10
v_lshl_add_u32 v10, v5, 4, v10
s_mul_i32 s42, s7, {YBLK}
s_add_u32 s42, s42, {Y0}
v_add_u32 v10, s42, v10
s_lshl_b32 s42, s7, 2
v_add_u32 v14, s42, v{vM}""")
stamp(9)
spin(C_Y, 4, 14, vT, extra="\n".join(f"ds_read_b128 {vr(YY+4*k,4)}, v10 offset:{64*k}" for k in range(4)))
stamp(10)
for k in range(4):
    for h in range(2): A(f"v_pk_fma_f32 {vr(YY+4*k+2*h,2)}, {vr(YY+4*k+2*h,2)}, {vr(GG+4*k+2*h,2)}, {vr(CC+4*k+2*h,2)}")
    for h in range(2): A(f"v_cvt_pk_bf16_f32 v{YY+4*k+h}, v{YY+4*k+2*h}, v{YY+4*k+2*h+1}")
    A(f"s_mov_b64 exec, {sr(44+2*k) if k < 3 else sr(98)}")
    A(f"global_store_dwordx2 v{8+(k>>1)}, {vr(YY+4*k,2)}, s[36:37] offset:{-4096 if (k&1)==0 else 0}")
    A("s_mov_b64 exec, -1")
stamp(11)
A(f"""s_cmp_gt_u32 s7, 1
s_cbranch_scc1 FIN
s_cmp_eq_u32 s7, 0
s_cselect_b32 s60, s60, s61
s_cselect_b32 s62, s62, s63
s_lshr_b32 s42, s62, 8
s_add_u32 s43, s42, 6
s_and_b32 s43, s43, 7
s_lshr_b32 s44, s43, 2
s_cmp_eq_u32 s44, s5
s_cbranch_scc1 FIN
s_and_b32 s44, s42, 3
s_cmp_eq_u32 s5, 0
s_cselect_b32 s43, s44, s43""")
A(f"""s_lshl_b32 s44, s62, 10
s_lshl_b32 s45, s4, 3
s_add_u32 s44, s44, s45
v_lshl_add_u32 v8, v13, 1, s44
global_load_ushort v16, v8, s[8:9]
s_lshr_b32 s44, s62, 5
s_lshl_b32 s44, s44, 2
s_bfe_u32 s46, s62, 0x20002
s_add_u32 s44, s44, s46
s_lshl_b32 s44, s44, 1
s_and_b32 s46, s60, 1
s_add_u32 s44, s44, s46
s_lshl_b32 s44, s44, 4
s_add_u32 s44, s44, {KEYS+4}
v_mov_b32 v9, s44
global_load_dword v17, v9, s[40:41] sc1
v_lshl_add_u32 v9, v13, 1, s45
global_load_ushort v18, v9, s[24:25]
s_lshl_b32 s44, s7, 11
s_lshl_b32 s45, s4, 4
s_add_u32 s44, s44, s45
s_add_u32 s44, s44, {PART}
v_lshl_add_u32 v9, v0, 12, s44
v_add_u32 v10, 64, v0
v_min_u32 v10, 85, v10
v_lshl_add_u32 v10, v10, 12, s44
s_mul_i32 s44, s43, {YBLK}
s_add_u32 s44, s44, {Y0}
s_bfe_u32 s45, s62, 0x40004
s_mul_i32 s45, s45, 272
s_add_u32 s44, s44, s45
s_and_b32 s45, s62, 15
s_lshl_b32 s45, s45, 4
s_add_u32 s44, s44, s45
v_lshl_add_u32 v15, v13, 2, s44
s_lshl_b32 s44, s43, 2
v_add_u32 v14, s44, v{vM}
s_ashr_i32 s44, s60, 31
s_orn2_b32 s44, 0x80000000, s44
s_xor_b32 s44, s44, s60
s_and_b32 s44, s44, s56
v_mov_b32 v19, {NLOG2E}
v_mul_f32 v19, s44, v19
v_exp_f32 v19, v19
s_mov_b32 s46, 0x0c0c0400
s_mov_b32 s47, 0x04000c0c
v_add_f32 v19, 1.0, v19
v_rcp_f32 v19, v19
s_waitcnt vmcnt(0)
v_cvt_pk_bf16_f32 v19, v19, v19
v_and_b32 v19, s56, v19
v_lshlrev_b32 v16, 16, v16
v_lshlrev_b32 v18, 16, v18
v_and_b32 v20, s56, v17
v_lshlrev_b32 v17, 16, v17
v_rcp_f32 v20, v20
v_sub_f32 v17, v16, v17
v_cvt_pk_bf16_f32 v17, v17, v17
v_and_b32 v17, s56, v17
v_mul_f32 v17, v17, v20
v_cvt_pk_bf16_f32 v17, v17, v17
v_and_b32 v17, s56, v17
v_mul_f32 v18, v18, v17
v_cvt_pk_bf16_f32 v18, v18, v18
v_and_b32 v18, s56, v18
s_mov_b32 s48, 0
PPOLL:
global_load_dwordx4 v[24:27], v9, s[40:41] sc1
global_load_dwordx4 v[28:31], v10, s[40:41] sc1
s_add_u32 s48, s48, 1
s_waitcnt vmcnt(0)
v_perm_b32 v20, v25, v24, s46
v_perm_b32 v21, v27, v26, s47
v_perm_b32 v22, v29, v28, s46
v_perm_b32 v23, v31, v30, s47
v_or_b32 v20, v20, v21
v_or_b32 v22, v22, v23
v_cmp_ne_u32 vcc, v20, v11
v_cmp_ne_u32 s[44:45], v22, v11
s_or_b64 vcc, vcc, s[44:45]
s_cmp_gt_u32 s48, {TIMEOUT}
s_cbranch_scc1 PDONE
s_cbranch_vccnz PPOLL
PDONE:""")
stamp(12)
A(f"""s_mov_b64 exec, 0x3fffff
v_pk_add_f32 v[24:25], v[24:25], v[28:29]
v_pk_add_f32 v[26:27], v[26:27], v[30:31]
s_mov_b64 exec, -1
v_permlane32_swap_b32 v24, v26
v_permlane32_swap_b32 v25, v27
v_add_f32 v24, v24, v26
v_add_f32 v25, v25, v27
v_permlane16_swap_b32 v24, v25
v_add_f32 v24, v24, v25
v_add_f32_dpp v24, v24, v24 row_ror:8 row_mask:0xf bank_mask:0xf
v_add_f32_dpp v24, v24, v24 row_ror:4 row_mask:0xf bank_mask:0xf
v_add_f32_dpp v24, v24, v24 row_ror:2 row_mask:0xf bank_mask:0xf
v_add_f32_dpp v24, v24, v24 row_ror:1 row_mask:0xf bank_mask:0xf
v_cvt_pk_bf16_f32 v24, v24, v24
v_and_b32 v24, s56, v24
v_mul_f32 v24, v24, v19
v_cvt_pk_bf16_f32 v24, v24, v24
v_and_b32 v24, s56, v24
v_add_f32 v24, v24, v17
v_cvt_pk_bf16_f32 v24, v24, v24
v_and_b32 v24, s56, v24
v_mul_f32 v25, {NLOG2E}, v24
v_exp_f32 v25, v25
v_add_f32 v25, 1.0, v25
v_rcp_f32 v25, v25
v_mul_f32 v24, v24, v25
v_cvt_pk_bf16_f32 v24, v24, v24
v_and_b32 v24, s56, v24""")
spin(C_Y, 4, 14, vT, extra="ds_read_b32 v26, v15")
A(f"""v_cvt_pk_bf16_f32 v26, v26, v26
v_and_b32 v26, s56, v26
v_add_f32 v26, v26, v18
v_cvt_pk_bf16_f32 v26, v26, v26
v_and_b32 v26, s56, v26
v_mul_f32 v26, v26, v24
v_cvt_pk_bf16_f32 v26, v26, v26
v_and_b32 v26, s56, v26
v_add_f32 v26, v26, v16
v_cvt_pk_bf16_f32 v26, v26, v26
s_mov_b32 s44, 0x00010001
s_mov_b32 s45, 0x00010001
s_mov_b64 exec, s[44:45]
global_store_short v8, v26, s[36:37]
s_mov_b64 exec, -1""")
stamp(13)
A.lab("FIN")
if STAMPS:
    A("s_waitcnt vmcnt(0)")
    stamp(14)
stamp_flush()
A("s_endpgm")

A.lab("KEYSR")
A(f"""v_lshlrev_b32 v13, 5, v0
v_add_u32 v13, {KEYS}, v13
v_add_u32 v14, 4096, v13
s_mov_b32 s48, 0
KPOLL:""")
for i in range(8):
    A(f"global_load_dwordx3 {vr(KV+4*i,3)}, v{13+(i>>2)}, s[40:41] offset:{2048*((i>>1)&1)+16*(i&1)} sc1")
A(f"""s_add_u32 s48, s48, 1
s_waitcnt vmcnt(0)
v_min3_u32 v16, v{KV+2}, v{KV+6}, v{KV+10}
v_max3_u32 v17, v{KV+2}, v{KV+6}, v{KV+10}
v_min3_u32 v16, v16, v{KV+14}, v{KV+18}
v_max3_u32 v17, v17, v{KV+14}, v{KV+18}
v_min3_u32 v16, v16, v{KV+22}, v{KV+26}
v_max3_u32 v17, v17, v{KV+22}, v{KV+26}
v_min3_u32 v16, v16, v{KV+30}, v11
v_max3_u32 v17, v17, v{KV+30}, v11
s_cmp_gt_u32 s48, {TIMEOUT}
v_cmp_ne_u32 vcc, v16, v17
s_cbranch_scc1 KDONE
s_and_b64 exec, exec, vcc
s_cbranch_execnz KPOLL
KDONE:
s_mov_b64 exec, -1""")
def k1(p): return KV+8*p
def k2(p): return KV+8*p+4
for a, b in ((0,1),(2,3),(0,2)):
    A(f"""v_min_u32 v16, v{k1(a)}, v{k1(b)}
    v_max_u32 v{k1(a)}, v{k1(a)}, v{k1(b)}
    v_max3_u32 v{k2(a)}, v{k2(a)}, v{k2(b)}, v16""")
m1, m2 = k1(0), k2(0)
for pat in ("quad_perm:[1,0,3,2]", "quad_perm:[2,3,0,1]", "row_half_mirror", "row_mirror"):
    A(f"""v_min_u32_dpp v16, v{m1}, v{m1} {pat} row_mask:0xf bank_mask:0xf
    v_max_u32_dpp v{m1}, v{m1}, v{m1} {pat} row_mask:0xf bank_mask:0xf
    v_max_u32_dpp v{m2}, v{m2}, v{m2} {pat} row_mask:0xf bank_mask:0xf
    v_max_u32 v{m2}, v{m2}, v16""")
for i in range(4): A(f"v_readlane_b32 s{96+i}, v{m1}, {16*i}")
for i in range(4): A(f"v_readlane_b32 s{60+i}, v{m2}, {16*i}")
for a, b in ((0,1),(2,3),(0,2)):
    A(f"""s_min_u32 s48, s{96+a}, s{96+b}
    s_max_u32 s{96+a}, s{96+a}, s{96+b}
    s_max_u32 s{60+a}, s{60+a}, s{60+b}
    s_max_u32 s{60+a}, s{60+a}, s48""")
A(f"""v_mov_b32 v16, s96
s_or_b32 s60, s60, 0x8000
v_mov_b32 v17, s60
ds_write_b64 v{vM}, v[16:17] offset:{SEL}
s_cmp_lg_u32 s2, 0
s_cbranch_scc1 KNOEP
v_mov_b32 v16, {EPOCH}
s_mov_b64 exec, 1
global_store_dword v16, v11, s[40:41] sc1
s_mov_b64 exec, -1
KNOEP:
s_cmp_eq_u32 s53, 3
s_mov_b32 s53, 0
s_cbranch_scc1 AFTK
s_branch SWC""")

AF, ACC, XT, BB, RAW, DT = 16, 80, 144, 148, 180, 188
A.lab("KWAVE")
A(f"""v_mov_b32 v4, 0
v_mov_b32 v5, 0
v_mov_b32 v6, 0
v_mov_b32 v7, 0
v_lshlrev_b32 v8, 2, v0
v_add_u32 v8, {MISC}, v8
ds_write_b32 v8, v4""")
A(f"""v_and_b32 v12, 15, v0
v_lshrrev_b32 v13, 4, v0
s_mul_i32 s51, s7, {UCH}
s_add_u32 s51, s51, {U0}
v_mul_u32_u24 v8, {UPH}, v13
v_lshl_add_u32 v8, v12, 3, v8
v_add_u32 v8, s51, v8
ds_write_b64 v8, v[4:5]
s_lshl_b32 s42, s4, 2
s_add_u32 s42, s42, s7
s_lshl_b32 s43, s42, 8
v_lshl_add_u32 v8, v0, 2, s43
s_lshl_b32 s43, s42, 1
s_and_b32 s43, s43, -4
s_waitcnt lgkmcnt(0)
s_load_dword s44, s[22:23], s43""")
for i in range(6): A(f"global_load_dword v{RAW+i}, v8, s[{10+2*i}:{11+2*i}]")

A(f"""s_barrier
s_mul_i32 s50, s7, {STG}
s_mov_b32 m0, s50
v_mov_b32 v{vM}, {MISC}
v_mov_b32 v{vOne}, 1
v_mov_b32 v8, 0x3f80
ds_write_addtid_b32 v8 offset:0
v_mul_u32_u24 v9, 272, v12
v_lshl_add_u32 v9, v13, 4, v9
v_add_u32 v9, s50, v9
s_waitcnt lgkmcnt(0)
s_lshl_b32 s45, s44, 16
s_and_b32 s44, s44, s56
s_bitcmp1_b32 s42, 0
s_cselect_b32 s44, s44, s45
v_mov_b32 v8, {LOG2E}
v_mul_f32 v8, s44, v8
v_exp_f32 v8, v8
s_mov_b32 s52, 0x01000c0c
s_mov_b32 s53, 0
v_cvt_pk_bf16_f32 v8, v8, v8
v_and_b32 v8, s56, v8
v_mul_f32 v10, {LOG2E}, v8
v_mul_f32 v11, {INV2PI}, v8""")
for i in range(12): A(f"v_mov_b32 v{DT+i}, 0")
A("s_waitcnt vmcnt(0)")
stamp(1)
A.lab("KLOOP")
Z = 80
Z8, Z128 = 96, 98
T = 100
for i in range(6): A(f"v_perm_b32 v{T+i}, v{RAW+i}, v{RAW+i}, s52")
A(f"""v_mul_f32 v{T}, v{T}, v10
v_mul_f32 v{T+1}, v{T+1}, v11
v_pk_mul_f32 {vr(T+6,2)}, {vr(T+4,2)}, {vr(T+2,2)} op_sel:[0,0] op_sel_hi:[0,1] neg_hi:[0,1]
v_mul_f32 v{T+8}, 0x41000000, v{T}
v_mul_f32 v{T+9}, 0x41000000, v{T+1}
v_mul_f32 v{T+10}, 0x43000000, v{T}
v_mul_f32 v{T+11}, 0x43000000, v{T+1}
v_pk_fma_f32 {vr(T+6,2)}, {vr(T+4,2)}, {vr(T+2,2)}, {vr(T+6,2)} op_sel:[1,1,0] op_sel_hi:[1,0,1] neg_lo:[0,1,0] neg_hi:[0,1,0]
v_fract_f32 v{T+1}, v{T+1}
v_fract_f32 v{T+9}, v{T+9}
v_fract_f32 v{T+11}, v{T+11}
v_exp_f32 v{T}, v{T}
v_exp_f32 v{T+8}, v{T+8}
v_exp_f32 v{T+10}, v{T+10}
v_cos_f32 v{Z+2}, v{T+1}
v_sin_f32 v{Z+3}, v{T+1}
v_cos_f32 v{Z8}, v{T+9}
v_sin_f32 v{Z8+1}, v{T+9}
v_cos_f32 v{Z128}, v{T+11}
v_sin_f32 v{Z128+1}, v{T+11}
v_pk_mul_f32 {vr(T+6,2)}, {vr(T+6,2)}, v[8:9] op_sel_hi:[1,0]
v_pk_mul_f32 {vr(Z+2,2)}, {vr(Z+2,2)}, {vr(T,2)} op_sel_hi:[1,0]
v_pk_mul_f32 {vr(Z8,2)}, {vr(Z8,2)}, {vr(T+8,2)} op_sel_hi:[1,0] neg_hi:[1,0]
v_pk_mul_f32 {vr(Z128,2)}, {vr(Z128,2)}, {vr(T+10,2)} op_sel_hi:[1,0]""")
def cm(o, w, z): return [f"v_pk_mul_f32 {vr(o,2)}, {vr(w,2)}, {vr(z,2)} op_sel:[0,0] op_sel_hi:[0,1]",
                         f"v_pk_fma_f32 {vr(o,2)}, {vr(w,2)}, {vr(z,2)}, {vr(o,2)} op_sel:[1,1,0] op_sel_hi:[1,0,1] neg_lo:[0,1,0]"]
cv = [0]
def emit_row(src, row):
    r = 140 + (cv[0] % 4); cv[0] += 1
    return [f"v_cvt_pk_bf16_f32 v{r}, v{src}, v{src+1}", f"ds_write_addtid_b32 v{r} offset:{272*row}"]
sB = emit_row(T+6, 41)
bb = [T+6, T+12]
for j in range(1, 16):
    sB += cm(bb[j&1], bb[(j-1)&1], Z8) + emit_row(bb[j&1], 41+j)
PP = 114
def preg(a): return Z128 if a == 1 else (PP+2*(a-2) if a <= 7 else 126+2*(a&1))
def prow(a): return {1:8, 2:16, 3:20, 4:24, 5:26, 6:28, 7:30}.get(a, 32+a-8)
sP = emit_row(Z128, 8)
for a in range(2, 17):
    sP += cm(preg(a), preg(a-1), Z128) + emit_row(preg(a), prow(a))
sZ = emit_row(Z+2, 1)
for b, (p, q) in {2:(1,1), 3:(2,1), 4:(2,2), 5:(4,1), 6:(4,2), 7:(4,3)}.items():
    sZ += cm(Z+2*b, Z+2*p, Z+2*q) + emit_row(Z+2*b, b)
tq = [130, 132, 134, 136]; ti = 0
prods = [(1,b,8+b) for b in range(1,8)] + [(2,2*b,16+b) for b in (1,2,3)] + [(3,2*b,20+b) for b in (1,2,3)] + [(a,4,prow(a)+1) for a in (4,5,6,7)]
sQ = []
for a, b, row in prods:
    o = tq[(ti % 2) + (2 if ti >= 8 else 0)]; ti += 1
    sQ.append(cm(o, preg(a), Z+2*b) + emit_row(o, row))
sZ += sum(sQ[:8], [])
sR = sum(sQ[8:], [])
def retemp(stream, base):
    out = []; n = 0; cur = None
    for t in stream:
        if t.startswith("v_cvt_pk"):
            cur = base + (n & 1); n += 1
            p = t.split(); t = f"{p[0]} v{cur}, {p[2]} {p[3]}"
        elif t.startswith("ds_write_addtid"):
            p = t.split(); t = f"{p[0]} v{cur} {p[2]}"
        out.append(t)
    return out
sB = retemp(sB, 138); sP = retemp(sP, 140); sZ = retemp(sZ, 142); sR = retemp(sR, 144)
streams = [sB, sP, sZ]; pos = [0,0,0,0]; rnd = 0
while True:
    if rnd == 30: streams.append(sR)
    any_ = False
    for i, s in enumerate(streams):
        if pos[i] < len(s): A(s[pos[i]]); pos[i] += 1; any_ = True
    rnd += 1
    if not any_ and rnd > 30: break
for c in range(4):
    for t, row in ((3, 41), (0, 0), (1, 16), (2, 32)):
        A(f"ds_read_b128 {vr(AF+16*c+4*t,4)}, v9 offset:{272*row+64*c}")
A("s_mov_b32 s52, 0x03020c0c\ns_add_u32 s53, s53, 1")
for c in range(4):
    A(f"s_waitcnt lgkmcnt({12-4*c})")
    for t in range(3):
        A(f"v_mfma_f32_16x16x32_bf16 {vr(DT+4*t,4)}, {vr(AF+16*c+4*t,4)}, {vr(AF+16*c+12,4)}, {vr(DT+4*t,4)}")
A("s_cmp_lt_u32 s53, 2\ns_cbranch_scc1 KLOOP")
stamp(2)
D0, D1, D2 = DT, DT+4, DT+8
A(f"""v_lshl_add_u32 v8, v12, 4, s50
v_lshl_add_u32 v10, v13, 10, v8
v_lshl_add_u32 v11, v13, 9, v8
v_lshl_add_u32 v14, v13, 8, v8
v_lshrrev_b32 v15, 1, v13
v_lshl_add_u32 v15, v15, 8, v8
v_and_b32 v9, 1, v13
v_lshl_add_u32 v15, v9, 3, v15
v_lshl_add_u32 v9, v0, 3, s50""")
E = 100
for i in range(4):
    A(f"v_mov_b32_dpp v{E+16+i}, v{D2+i} quad_perm:[0,0,2,2] row_mask:0xf bank_mask:0xf")
for i in range(4):
    A(f"v_cvt_pk_bf16_f32 v{E+4*i}, v{E+16+i}, v{D2+i}")
    for q in range(1, 4): A(f"v_cvt_pk_bf16_f32 v{E+4*i+q}, v{D2+i}, v{D2+i}")
A("s_mov_b32 exec_hi, 1")
for i in range(4):
    A(f"ds_write_b128 v10, {vr(E+4*i,4)} offset:{KXO+2*(1024+128*i-4)}")
    if i == 0: A("s_mov_b32 exec_hi, 0")
A("s_mov_b64 exec, -1")
E2 = 120
for h in range(2):
    a, b = D1+2*h, D1+2*h+1
    A(f"""v_cvt_pk_bf16_f32 v{E2+4*h}, v{a}, v{a}
    v_cvt_pk_bf16_f32 v{E2+4*h+1}, v{a}, v{a}
    v_cvt_pk_bf16_f32 v{E2+4*h+2}, v{a}, v{b}
    v_cvt_pk_bf16_f32 v{E2+4*h+3}, v{b}, v{b}""")
A(f"""v_cvt_pk_bf16_f32 v{E2+8}, v{D1}, v{D1}
v_cvt_pk_bf16_f32 v{E2+9}, v{D1}, v{D1+1}
v_cvt_pk_bf16_f32 v{E2+10}, v{D1+2}, v{D1+2}
v_cvt_pk_bf16_f32 v{E2+11}, v{D1+2}, v{D1+3}
v_cvt_pk_bf16_f32 v{E2+12}, v{D0}, v{D0+1}
v_cvt_pk_bf16_f32 v{E2+13}, v{D0+2}, v{D0+3}
s_mov_b32 exec_lo, 0
ds_write_b128 v11, {vr(E2,4)} offset:{KXO-4}
ds_write_b128 v11, {vr(E2+4,4)} offset:{KXO-4+256}
s_mov_b32 exec_lo, -1
s_mov_b32 exec_hi, 0
ds_write_b128 v14, {vr(E2+8,4)} offset:{KXO+2*(256-1)}
s_mov_b64 exec, 31
ds_write_b64 v9, v[4:5]
s_mov_b64 exec, -1
ds_write_b64 v15, {vr(E2+12,2)} offset:{KXO}""")
A(f"""v_and_b32 v8, 3, v0
v_lshrrev_b32 v9, 2, v12
v_sub_u32 v9, v8, v9
v_lshlrev_b32 v9, 3, v9
v_lshlrev_b32 v10, 6, v13
v_sub_u32 v9, v9, v10
s_add_u32 s42, s50, {KXO+192}
v_add_u32 v9, s42, v9""")
for q in range(16):
    for h in range(2):
        A(f"ds_read_b64_tr_b16 {vr(AF+4*q+2*h,2)}, v9 offset:{256*q+32-32*h}")
A(f"""v_lshlrev_b32 v10, 3, v12
v_lshl_add_u32 v10, v13, 4, v10
s_add_u32 s42, s51, 8
v_add_u32 v10, s42, v10
v_mul_u32_u24 v11, {UPH}, v8
v_lshl_add_u32 v11, v13, 4, v11
s_add_u32 s42, s51, 128
v_add_u32 v11, s42, v11
v_mul_u32_u24 v14, 272, v12
v_lshl_add_u32 v14, v13, 6, v14
s_lshl_b32 s42, s7, 2
s_add_u32 s42, s42, {Y0}
v_add_u32 v14, s42, v14
v_cmp_gt_u32 vcc, 16, v0
v_add_u32 v15, 47, v0
v_subrev_u32 v9, 16, v0
v_cndmask_b32 v15, v9, v15, vcc
v_writelane_b32 v15, -1, 0
s_add_u32 s42, s50, {CAR}
v_lshl_add_u32 v15, v15, 4, s42
v_lshl_add_u32 v8, v0, 4, s42
v_lshl_add_u32 v9, v0, 2, s42
v_subrev_u32 v9, 256, v9
s_mov_b64 exec, 1
ds_write_b128 v15, v[4:7]
s_mov_b64 exec, -1""")
stamp(3)
spin(C_U, 4, vM, vT)
stamp(4)
A("s_setprio 1\ns_cmp_eq_u32 s5, 1\ns_cbranch_scc1 CONV1")

def conv(blocks, coff, nbx, xloc, xpos):
    items = []
    emax = 2*max(blocks)
    for e in range(-1, emax+1):
        for rho in range(4):
            ms = [(ACC+16*i+4*rho, 2*nb-e, e == -1) for i, nb in reversed(list(enumerate(blocks))) if e <= 2*nb]
            done = [i for i, nb in enumerate(blocks) if e == 2*nb and rho == 3]
            items.append(dict(kind="b", off=rho*UPH+64*(e+1), ms=ms, done=done))
    xi = [dict(kind="x", off=64*t, ms=[(XT, 2*nbx-1-t, t == 0)], done=(["x"] if t == 2*nbx-1 else [])) for t in range(2*nbx)]
    out = items[:xpos]; rest = items[xpos:]
    while xi or rest:
        if xi: out.append(xi.pop(0))
        if rest: out.append(rest.pop(0))
    items = out
    fifo = []
    def ds(text, tag=None):
        A(text); fifo.append(tag)
    def loads(n):
        it = items[n]; b = BB + 4*(n % 8)
        if it["kind"] == "b":
            return [(f"ds_read_b64 {vr(b,2)}, v10 offset:{it['off']}", n), (f"ds_read_b64 {vr(b+2,2)}, v10 offset:{it['off']+8}", n)]
        return [(f"ds_read_b128 {vr(b,4)}, v11 offset:{it['off']}", n)]
    def finish(i):
        if i == "x":
            return [f"v_add_f32_dpp v{XT+3}, v{XT+2}, v{XT+3} row_shl:1 row_mask:0xf bank_mask:0xf bound_ctrl:0",
                    f"v_add_f32_dpp v{XT+3}, v{XT+1}, v{XT+3} row_shl:2 row_mask:0xf bank_mask:0xf bound_ctrl:0",
                    f"s_mov_b32 exec_lo, 0|s_mov_b32 exec_hi, 0xe0000000|ds_write_b32 v9, v{XT+3} offset:{coff[xloc]}|s_mov_b64 exec, -1"]
        d = [ACC+16*i+4*r for r in range(4)]
        o = i*YBLK; t = 184
        return [f"v_add_f32 v{d[3]+1}, v{d[3]+1}, v{d[2]+2}",
                f"v_add_f32 v{d[3]+2}, v{d[3]+2}, v{d[2]+3}",
                f"v_add_f32 v{d[3]+1}, v{d[3]+1}, v{d[1]+3}",
                f"v_add_f32 v{d[0]+3}, v{d[0]+3}, v{d[1]+2}",
                f"ds_write_b128 v8, {vr(d[3],4)} offset:{coff[i]}",
                f"ds_read_b128 {vr(t,4)}, v15 offset:{coff[i]}@c{i}",
                f"v_add_f32 v{d[0]+1}, v{d[0]+1}, v{d[1]}",
                f"v_add_f32 v{d[0]+3}, v{d[0]+3}, v{d[2]+1}",
                f"v_add_f32 v{d[0]+2}, v{d[0]+2}, v{d[1]+1}",
                f"v_add_f32 v{d[0]+3}, v{d[0]+3}, v{d[3]}",
                f"v_add_f32 v{d[0]+2}, v{d[0]+2}, v{d[2]}",
                f"ds_write_b32 v14, v{d[0]+3} offset:{o+48}",
                "", "", "", "", "", "",
                f"#c{i}|v_add_f32 v{d[0]}, v{d[0]}, v{t+1}",
                f"v_add_f32 v{d[0]+1}, v{d[0]+1}, v{t+2}",
                f"v_add_f32 v{d[0]+2}, v{d[0]+2}, v{t+3}",
                f"ds_write_b32 v14, v{d[0]} offset:{o}",
                f"ds_write_b32 v14, v{d[0]+1} offset:{o+16}",
                f"ds_write_b32 v14, v{d[0]+2} offset:{o+32}",
                f"s_mov_b64 exec, 1|ds_add_u32 v{vM}, v{vOne} offset:{C_Y+4*i}|s_mov_b64 exec, -1"]
    def wait(tag):
        ks = [k for k, t in enumerate(fifo) if t == tag]
        if not ks: return
        A(f"s_waitcnt lgkmcnt({min(len(fifo)-1-ks[-1],15)})")
        del fifo[:ks[-1]+1]
    DEPTH = 6
    lq = []; nl = 0; fq = []
    def emit_f(t):
        for p in t.split("|"):
            if p == "": continue
            if p.startswith("#"): wait(p[1:])
            elif p.startswith("ds_"): ds(*p.split("@"))
            else: A(p)
    for n in range(min(DEPTH, len(items))):
        for t, tag in loads(n): ds(t, tag)
    nl = min(DEPTH, len(items)); mc = 0
    for n, it in enumerate(items):
        while lq and lq[0][1] <= n: ds(*lq.pop(0))
        wait(n)
        if nl < len(items) and nl <= n + DEPTH: lq += loads(nl); nl += 1
        b = BB + 4*(n % 8)
        for acc, q, first in it["ms"]:
            A(f"v_mfma_f32_16x16x32_bf16 {vr(acc,4)}, {vr(AF+4*q,4)}, {vr(b,4)}, " + ("0" if first else vr(acc,4)))
            mc += 1
            for _ in range(2):
                if lq: ds(*lq.pop(0))
                elif fq and fq[0][0] <= mc: emit_f(fq.pop(0)[1])
        for i in it["done"]:
            fq += [(mc+3, t) for t in finish(i)]
    for _, t in fq: emit_f(t)
conv([0,1,6,7], [0, 1024, 2064, 3088], 6, 2, 16)
stamp(5)
stamp_flush()
A("s_endpgm")
A.lab("CONV1")
conv([2,3,4,5], [0, 1024, 2048, 3072], 2, 0, 2)
stamp(5)
stamp_flush()
A.lab("END")
A("s_endpgm")

n = A.fix(verbose=bool(OPT.get("v", 0)))
hdr = open("recurrent_scan__ssm_conv_s4__moe_arch_mod__prompt.s.ref").read().split("; Override launch")[0]
out = hdr + f"""; @launch grid=(256,1,1) block=(512,1,1) lds={LDS_TOTAL}
.amdgcn_target "amdgcn-amd-amdhsa--gfx950"
.text
.globl {NAME}
.p2align 8
.type {NAME},@function
{NAME}:
""" + A.text() + f""".section .rodata,"a"
.p2align 6
.amdhsa_kernel {NAME}
  .amdhsa_next_free_vgpr 256
  .amdhsa_next_free_sgpr 102
  .amdhsa_accum_offset 256
  .amdhsa_group_segment_fixed_size 0
  .amdhsa_kernarg_size 136
  .amdhsa_user_sgpr_count 2
  .amdhsa_user_sgpr_kernarg_segment_ptr 1
  .amdhsa_system_sgpr_workgroup_id_x 1
.end_amdhsa_kernel
"""
open(sys.argv[1], "w").write(out)
print("nops inserted", n, "lines", len(A.L), "lds", LDS_TOTAL)
```

```python
import sys, os
sys.path.insert(0, os.path.dirname(__file__))
from asmlib import Asm
NAME = "recurrent_scan__ssm_conv_s4__moe_arch_mod__prompt_kernel"
OPT = dict(stamps=0, dbg=0, cpf=1, iso=0, wpf=4, kst=5, krep=0)
for a in sys.argv[2:]:
    k, v = a.split("="); OPT[k] = int(v, 0)
STAMPS = OPT["stamps"]

KEYS = 0x480000; EPOCH = 0x408000; PART = 0x410000;
KST = OPT['kst']; KREP = (256 << KST) if OPT['krep'] else 0
STAMPW = 0x800000
STG = 15504
U0 = 4*STG; UPH = 1184; UCH = 4*UPH
Y0 = U0 + 4*UCH; YBLK = 4352
MISC = Y0 + 4*YBLK + 544
C_U, C_Y, C_ST, C_W, C_F, SEL = 0, 4, 20, 24, 28, 32
XCH = MISC + 64; FRED = XCH + 512
W0 = Y0 + 20480; WU = W0 + 16384; WD = W0 + 32768; WDS = 1056
LDS_TOTAL = WD + 16*WDS
CAR = 4368
KXO = 40
LOG2E = "0x3fb8aa3b"; NLOG2E = "0xbfb8aa3b"; INV2PI = "0x3e22f983"
TIMEOUT = 20000

A = Asm()
def vr(b, n): return f"v[{b}:{b+n-1}]"
def sr(b, n=2): return f"s[{b}:{b+n-1}]"
nstamp = [0]
def stamp(i):
    if STAMPS: A(f"s_memrealtime s[{64+2*i}:{65+2*i}]")
    if STAMPS and OPT["iso"] and i < 8: A(f"s_memtime s[{80+2*i}:{81+2*i}]")
def stamp_flush():
    if not STAMPS: return
    A(f"""s_lshl_b32 s60, s2, 3
    s_add_u32 s60, s60, s3
    s_lshl_b32 s60, s60, 7
    s_add_u32 s60, s60, {STAMPW}
    v_mov_b32 v1, s60
    s_mov_b64 exec, 1
    s_waitcnt lgkmcnt(0)""")
    for i in range(16):
        A(f"v_mov_b32 v2, s{64+2*i}\nv_mov_b32 v3, s{65+2*i}\nglobal_store_dwordx2 v1, v[2:3], s[40:41] offset:{8*i}")

def signal(off, vM, vOne):
    A(f"s_mov_b64 exec, 1\nds_add_u32 v{vM}, v{vOne} offset:{off}\ns_mov_b64 exec, -1")
def spin(off, target, vM, vT, extra="", nonzero=False):
    l = A.newlab("SPIN"); d = A.newlab("SPD")
    A(f"s_mov_b32 s59, 0")
    A.lab(l)
    A(f"ds_read_b32 v{vT}, v{vM} offset:{off}")
    if extra: A(extra)
    A(f"""s_add_u32 s59, s59, 1
    s_cmp_gt_u32 s59, {TIMEOUT*16}
    s_cbranch_scc1 {d}
    s_waitcnt lgkmcnt(0)
    v_readfirstlane_b32 s58, v{vT}""")
    A(f"s_cmp_eq_u32 s58, 0" if nonzero else f"s_cmp_lt_u32 s58, {target}")
    A(f"s_cbranch_scc1 {l}")
    A.lab(d)
    A("s_waitcnt lgkmcnt(0)")

A(f"""s_cmp_ge_u32 s2, 256
s_cbranch_scc1 END
s_load_dwordx16 s[8:23], s[0:1], 0
s_load_dwordx16 s[24:39], s[0:1], 64
s_load_dwordx2 s[40:41], s[0:1], 128""")
if STAMPS:
    for i in range(16): A(f"s_mov_b64 s[{64+2*i}:{65+2*i}], 0")
stamp(0)
A(f"""v_lshrrev_b32 v1, 6, v0
v_and_b32 v0, 63, v0
v_readfirstlane_b32 s3, v1
s_and_b32 s42, s2, 7
s_lshr_b32 s43, s2, 3
s_and_b32 s44, s43, 15
s_lshr_b32 s5, s43, 4
s_lshl_b32 s4, s42, 4
s_add_u32 s4, s4, s44
s_mul_i32 s6, s42, 11
s_add_u32 s6, s6, s44
s_cmp_lt_u32 s44, 11
s_cselect_b32 s6, s6, 999
s_cmp_eq_u32 s5, 1
s_cselect_b32 s6, s6, 999
s_and_b32 s7, s3, 3
s_mov_b32 s56, 0xffff0000
s_cmp_lt_u32 s3, 4
s_cbranch_scc1 KWAVE""")

vM, vOne, vT = 1, 2, 3
XA, XB, WR = 16, 24, 32
A(f"""s_setprio 2
s_lshr_b32 s42, s2, 2
s_lshl_b32 s42, s42, 5
s_and_b32 s43, s2, 3
s_lshl_b32 s43, s43, 2
s_add_u32 s42, s42, s43
v_and_b32 v4, 4, v0
v_and_b32 v5, 3, v0
v_lshl_or_b32 v4, v4, 2, v5
v_add_u32 v6, s42, v4
v_lshrrev_b32 v7, 3, v0
s_lshl_b32 s43, s7, 8
v_lshl_add_u32 v8, v7, 4, s43
v_lshl_add_u32 v9, v6, 10, v8
v_mov_b32 v10, {EPOCH}
s_waitcnt lgkmcnt(0)
global_load_dwordx4 {vr(XA,4)}, v9, s[8:9]
global_load_dwordx4 {vr(XB,4)}, v9, s[8:9] offset:128
global_load_dwordx4 {vr(WR,4)}, v8, s[28:29]
global_load_dwordx4 {vr(WR+4,4)}, v8, s[28:29] offset:128
global_load_dword v11, v10, s[40:41] sc1
s_lshl_b32 s44, s4, 3
s_load_dwordx2 s[54:55], s[24:25], s44
s_barrier""")
A(f"""v_mov_b32 v{vM}, {MISC}
v_mov_b32 v{vOne}, 1
v_and_b32 v12, 7, v0
v_lshrrev_b32 v13, 4, v0
s_lshl_b32 s43, s7, 2
s_add_u32 s43, s43, {XCH}
v_lshl_add_u32 v13, v13, 4, s43
v_lshl_add_u32 v13, v12, 6, v13
v_lshlrev_b32 v14, 6, v12
v_add_u32 v14, {XCH}, v14
s_lshl_b32 s43, s7, 20
s_lshl_b32 s44, s2, 7
s_add_u32 s43, s43, s44
v_lshl_add_u32 v15, v7, 16, s43
v_lshl_add_u32 v15, v12, 4, v15
s_add_u32 s44, s40, 32768
s_addc_u32 s45, s41, 0
s_add_u32 s46, s40, 524288
s_addc_u32 s47, s41, 0
s_add_u32 s48, s40, 557056
s_addc_u32 s49, s41, 0
s_mov_b32 s57, 0x3f803f80""")
if OPT["iso"]:
    signal(C_U, vM, vOne)
    A("s_branch FIN")
A(f"""v_lshrrev_b32 v60, 1, v0
v_mul_u32_u24 v60, 2752, v60
v_and_b32 v61, 1, v0
v_lshl_add_u32 v60, v61, 4, v60
s_lshl_b32 s43, s6, 5
v_add_u32 v240, s43, v60
s_lshl_b32 s43, s6, 14
v_lshrrev_b32 v61, 4, v0
v_lshl_add_u32 v60, v61, 10, s43
v_and_b32 v62, 15, v0
v_lshl_add_u32 v241, v62, 4, v60
s_and_b32 s62, s2, 7
s_lshr_b32 s42, s2, 3
s_lshl_b32 s42, s42, 2
s_add_u32 s42, s42, s7
s_mul_i32 s43, s42, {4*2752}
s_mul_i32 s60, s62, 352
s_add_u32 s43, s43, s60
v_mul_u32_u24 v61, 2752, v61
v_lshlrev_b32 v62, 6, v62
v_min_u32 v62, 348, v62
v_add3_u32 v245, v61, v62, s43
v_min_u32 v245, {512*2752-4}, v245
s_mul_i32 s42, s42, 1408
s_mul_i32 s60, s62, {176*1024}
s_add_u32 s42, s42, s60
v_min_u32 v62, 21, v0
v_lshl_add_u32 v246, v62, 6, s42
v_min_u32 v246, {1376*1024-4}, v246
s_mul_i32 s62, s62, {KREP}
s_add_u32 s62, s62, {KEYS}
s_waitcnt vmcnt(0)""")
stamp(1)
xs = [XA+i for i in range(4)] + [XB+i for i in range(4)]
for i in range(8):
    c = lambda r: "0" if i == 0 else f"v{r}"
    A(f"""v_dot2_f32_bf16 v40, v{xs[i]}, s57, {c(40)}
    v_dot2_f32_bf16 v41, v{xs[i]}, v{xs[i]}, {c(41)}
    v_dot2_f32_bf16 v42, v{xs[i]}, v{WR+i}, {c(42)}
    v_dot2_f32_bf16 v43, v{WR+i}, s57, {c(43)}""")
A(f"""v_mov_b32 v{XA+4}, v{XA+2}
v_mov_b32 v{XA+5}, v{XA+3}
v_permlane32_swap_b32 v40, v41
v_mov_b32 v{XB+4}, v{XB+2}
v_permlane32_swap_b32 v42, v43
v_add_f32 v40, v40, v41
v_add_f32 v42, v42, v43
v_mov_b32 v{XB+5}, v{XB+3}
v_permlane16_swap_b32 v40, v42
v_add_f32 v40, v40, v42
v_add_u32 v11, 1, v11
v_add_f32_dpp v40, v40, v40 row_ror:8 row_mask:0xf bank_mask:0xf
ds_write_b32 v13, v40""")
signal(C_ST, vM, vOne)
A(f"""v_mov_b32 v{XA+3}, v11
v_mov_b32 v{XA+7}, v11
v_mov_b32 v{XB+3}, v11
v_mov_b32 v{XB+7}, v11
v_readfirstlane_b32 s50, v11""")
spin(C_ST, 4, vM, vT, extra="\n".join(f"ds_read_b128 {vr(44+4*q,4)}, v14 offset:{16*q}" for q in range(4)))
for q in (0, 2, 1, 3):
    A(f"v_pk_add_f32 {vr(44+4*q,2)}, {vr(44+4*q,2)}, {vr(46+4*q,2)}")
A(f"""v_add_f32 v44, v44, v45
v_add_f32 v52, v52, v53
v_mul_f32 v44, 0x3b000000, v44
v_mul_f32 v52, 0x3b000000, v52
v_fma_f32 v52, -v44, v44, v52
v_max_f32 v52, 0, v52
v_cvt_pk_bf16_f32 v52, v52, v52
v_and_b32 v52, s56, v52
v_add_f32 v52, 0x3727c5ac, v52
v_cvt_pk_bf16_f32 v52, v52, v52
v_and_b32 v52, s56, v52
v_sqrt_f32 v52, v52
v_add_f32 v48, v48, v49
v_cvt_pk_bf16_f32 v{XA+2}, v44, v52
v_cvt_pk_bf16_f32 v{XA+6}, v44, v52
global_store_dwordx4 v15, {vr(XA,4)}, s[40:41] sc1
v_cvt_pk_bf16_f32 v{XB+2}, v44, v52
global_store_dwordx4 v15, {vr(XA+4,4)}, s[44:45] sc1
v_cvt_pk_bf16_f32 v{XB+6}, v44, v52
global_store_dwordx4 v15, {vr(XB,4)}, s[46:47] sc1
global_store_dwordx4 v15, {vr(XB+4,4)}, s[48:49] sc1""")
stamp(2)
A(f"""s_cmp_lg_u32 s7, 3
s_cbranch_scc1 NOKEYST
v_and_b32 v45, s56, v{XA+2}
v_lshlrev_b32 v46, 16, v{XA+2}
v_rcp_f32 v45, v45
v_add_f32 v56, v56, v57
v_fma_f32 v48, -v46, v56, v48
v_mul_f32 v48, v48, v45
v_cvt_pk_bf16_f32 v48, v48, v48
v_ashrrev_i32 v49, 31, v48
v_or_b32 v49, 0x80000000, v49
v_xor_b32 v48, v48, v49
v_lshlrev_b32 v49, 1, v6
v_or_b32 v49, 0x8000, v49
v_and_or_b32 v60, v48, s56, v49
v_max_u32_dpp v50, v60, v60 quad_perm:[1,0,3,2] row_mask:0xf bank_mask:0xf
v_max_u32_dpp v50, v50, v50 quad_perm:[2,3,0,1] row_mask:0xf bank_mask:0xf
v_max_u32_dpp v50, v50, v50 row_half_mirror row_mask:0xf bank_mask:0xf
v_cmp_ne_u32 vcc, v60, v50
v_cndmask_b32 v51, 0, v60, vcc
v_cndmask_b32 v53, 0, v{vOne}, vcc
v_max_u32_dpp v51, v51, v51 quad_perm:[1,0,3,2] row_mask:0xf bank_mask:0xf
v_max_u32_dpp v51, v51, v51 quad_perm:[2,3,0,1] row_mask:0xf bank_mask:0xf
v_max_u32_dpp v51, v51, v51 row_half_mirror row_mask:0xf bank_mask:0xf
s_lshl_b32 s43, s2, {KST}
s_add_u32 s43, s43, {KEYS}
v_cmp_ge_u32 vcc, v60, v51
v_or_b32 v60, v60, v53
v_mov_b32 v61, v{XA+2}
v_mov_b32 v62, v11
v_mov_b32 v63, 0
v_lshl_add_u32 v53, v53, 4, s43
{"v_lshl_add_u32 v53, v7, %d, v53" % (8+KST) if KREP else ""}
{"s_mov_b64 exec, vcc" if KREP else "s_and_b64 exec, vcc, 0xff"}
global_store_dwordx4 v53, v[60:63], s[40:41] sc1
s_mov_b64 exec, -1
NOKEYST:""")
def iopf():
    A("global_load_dword v247, v245, s[30:31]\nglobal_load_dword v248, v245, s[32:33]\nglobal_load_dword v249, v246, s[34:35]")
if OPT["wpf"] == 4: iopf()
GA, GB, KV = 64, 80, 96
A(f"""s_add_u32 s42, s7, 2
s_add_u32 s43, s7, 4
s_cmp_lt_u32 s7, 2
s_cselect_b32 s43, s7, s43
s_cselect_b32 s52, s7, 5
s_cmp_eq_u32 s7, 3
s_cselect_b32 s52, 99, s52
s_cmp_eq_u32 s5, 0
s_cselect_b32 s51, s43, s42
s_cselect_b32 s52, s42, s52
s_lshl_b32 s42, s4, 15
s_lshl_b32 s43, s51, 12
s_add_u32 s43, s43, s42
s_add_u32 s100, s40, s43
s_addc_u32 s101, s41, 0
s_and_b32 s43, s52, 7
s_lshl_b32 s43, s43, 12
s_add_u32 s43, s43, s42
s_add_u32 s46, s40, s43
s_addc_u32 s47, s41, 0
v_lshlrev_b32 v243, 9, v7
v_lshl_add_u32 v243, v12, 4, v243
v_mul_u32_u24 v9, {UPH}, v5
v_lshl_add_u32 v9, v7, 4, v9
v_and_b32 v10, 4, v0
v_lshl_add_u32 v9, v10, 1, v9
s_lshl_b32 s42, s51, 7
s_add_u32 s42, s42, {U0+128}
v_add_u32 v244, s42, v9
s_lshl_b32 s42, s52, 7
s_add_u32 s42, s42, {U0+128}
v_add_u32 v9, s42, v9
s_mov_b32 s53, s7
s_cmp_gt_u32 s52, 7
s_cselect_b32 s42, 0, 1
v_mov_b32 v242, s42""")
for k in range(4): A(f"v_mov_b32 v{GB+4*k+3}, v11")
A("s_cmp_gt_u32 s6, 85\ns_cbranch_scc1 NODMA2\ns_cmp_eq_u32 s7, 3\ns_cbranch_scc1 SERV\nNODMA2:")
A("s_waitcnt vmcnt(3)" if OPT["wpf"] == 4 else "s_waitcnt vmcnt(0)")
if OPT["wpf"] == 5: iopf()
A("DR1:\ns_mov_b32 s59, 0")
stamp(3)
A.lab("SWL")
for k in range(4): A(f"global_load_dwordx4 {vr(GA+4*k,4)}, v243, s[100:101] offset:{128*k} sc1")
A("s_cmp_gt_u32 s52, 7\ns_cbranch_scc1 SWNB")
for k in range(4): A(f"global_load_dwordx4 {vr(GB+4*k,4)}, v243, s[46:47] offset:{128*k} sc1")
A.lab("SWNB")
A(f"""s_add_u32 s59, s59, 1
s_waitcnt vmcnt(0)
v_min3_u32 v16, v{GA+3}, v{GA+7}, v{GA+11}
v_max3_u32 v17, v{GA+3}, v{GA+7}, v{GA+11}
v_min3_u32 v16, v16, v{GA+15}, v{GB+3}
v_max3_u32 v17, v17, v{GA+15}, v{GB+3}
v_min3_u32 v16, v16, v{GB+7}, v{GB+11}
v_max3_u32 v17, v17, v{GB+7}, v{GB+11}
v_min3_u32 v16, v16, v{GB+15}, v11
v_max3_u32 v17, v17, v{GB+15}, v11
s_cmp_gt_u32 s59, {TIMEOUT}
v_cmp_ne_u32 vcc, v16, v17
s_cbranch_scc1 SWD
s_and_b64 exec, exec, vcc
s_cbranch_execnz SWL
SWD:
s_mov_b64 exec, -1""")
stamp(4)
R_, N_, X_, XN_, P_ = 16, 20, 24, 40, 56
def norm(G, va):
    for k in range(4): A(f"v_and_b32 v{R_+k}, s56, v{G+4*k+2}")
    for k in range(4): A(f"v_rcp_f32 v{R_+k}, v{R_+k}\nv_lshlrev_b32 v{N_+k}, 16, v{G+4*k+2}")
    for k in range(4): A(f"v_lshlrev_b32 v{X_+k}, 16, v{G+4*k}")
    for h in range(2): A(f"v_pk_mul_f32 {vr(N_+2*h,2)}, {vr(N_+2*h,2)}, {vr(R_+2*h,2)} neg_lo:[1,0] neg_hi:[1,0]")
    for j in range(4):
        if j < 3:
            jj = j+1
            for k in range(4):
                if jj & 1: A(f"v_and_b32 v{X_+4*jj+k}, s56, v{G+4*k+(jj>>1)}")
                else: A(f"v_lshlrev_b32 v{X_+4*jj+k}, 16, v{G+4*k+(jj>>1)}")
        for h in range(2): A(f"v_pk_fma_f32 {vr(XN_+4*j+2*h,2)}, {vr(X_+4*j+2*h,2)}, {vr(R_+2*h,2)}, {vr(N_+2*h,2)}")
        for h in range(2): A(f"v_cvt_pk_bf16_f32 v{P_+2*j+h}, v{XN_+4*j+2*h}, v{XN_+4*j+2*h+1}")
        A(f"ds_write_b64 v{va}, {vr(P_+2*j,2)} offset:{j*UCH}")
A("s_cmp_gt_u32 s52, 7\ns_cbranch_scc1 NONB")
norm(GB, 9)
A.lab("NONB")
norm(GA, 244)
signal(C_U, vM, 242)
stamp(5)
A("s_setprio 0\ns_cmp_eq_u32 s53, 8\ns_cbranch_scc1 NOF3\ns_cmp_eq_u32 s53, 3\ns_cbranch_scc1 KEYSR")
A.lab("AFTK")

FA, FD, FB, FDG = 128, 160, 176, 192
A(f"""v_and_b32 v12, 15, v0
v_lshrrev_b32 v13, 4, v0
s_cmp_gt_u32 s6, 85
s_cbranch_scc1 NOF1""")
A(f"""v_lshrrev_b32 v14, 2, v12
s_mov_b32 s57, {WDS}
s_lshl_b32 s42, s7, 12
s_add_u32 s42, s42, {W0}
v_lshl_add_u32 v15, v13, 8, s42
v_lshl_add_u32 v15, v14, 5, v15
v_lshl_add_u32 v15, v5, 3, v15
v_lshlrev_b32 v14, 8, v14
v_mad_u32_u24 v14, v13, s57, v14
s_mul_i32 s42, s7, {4*WDS}
s_add_u32 s42, s42, {WD}
v_add_u32 v14, s42, v14
v_lshl_add_u32 v14, v5, 3, v14""")
A.lab("NOF1")
spin(SEL+4, 0, vM, vT, extra=f"ds_read_b32 v8, v{vM} offset:{SEL}", nonzero=True)
A(f"""v_readfirstlane_b32 s60, v8
s_and_b32 s57, s2, 7
s_mul_i32 s57, s57, {KREP}
s_add_u32 s57, s57, {KEYS}
s_mov_b32 s61, s58
s_bfe_u32 s62, s60, 0xb0001
s_bfe_u32 s63, s61, 0xb0001""")
stamp(6)
A(f"""s_cmp_gt_u32 s6, 85
s_cbranch_scc1 NOF2
s_setprio 2
v_and_b32 v8, 1, v0
v_mov_b32 v9, s60
v_mov_b32 v10, s61
v_cmp_eq_u32 vcc, 1, v8
v_cndmask_b32 v9, v9, v10, vcc
v_bfe_u32 v10, v9, 1, 11
v_lshrrev_b32 v8, 2, v12
v_lshlrev_b32 v8, 6, v8
v_lshl_add_u32 v8, v13, 4, v8
v_and_b32 v16, 2, v0
v_lshl_add_u32 v8, v16, 2, v8
s_lshl_b32 s42, s7, 8
v_lshl_add_u32 v16, v10, 10, s42
v_add_u32 v8, v8, v16
global_load_dwordx2 v[200:201], v8, s[8:9]
v_lshrrev_b32 v16, 5, v10
v_bfe_u32 v17, v10, 2, 2
v_lshl_add_u32 v16, v16, 2, v17
v_and_b32 v17, 1, v9
v_lshlrev_b32 v16, {KST}, v16
v_lshl_add_u32 v16, v17, 4, v16
v_add_u32 v16, s57, v16
global_load_dword v202, v16, s[40:41] offset:4 sc1""")
rd = ""
for m in range(2):
    for c in range(4):
        for h in range(2):
            rd += f"ds_read_b64_tr_b16 {vr(FA+16*m+4*c+2*h,2)}, v15 offset:{m*16384+c*1024+128*h}\n"
for c in range(4):
    for t in range(2):
        rd += f"ds_read_b64_tr_b16 {vr(FD+4*c+2*t,2)}, v14 offset:{64*c+32*t}\n"
A(rd)
A.lab("NOF2")

GG, CC, YY = 64, 80, 96
def precompute():
    for j in range(4):
        for k in range(4): A(f"v_mul_f32 v{16+k}, {NLOG2E}, v{XN_+4*j+k}")
        for k in range(4): A(f"v_exp_f32 v{16+k}, v{16+k}")
        for k in range(4): A(f"v_mul_f32 v{20+k}, s{44+j}, v{XN_+4*j+k}")
        for k in range(4): A(f"v_add_f32 v{16+k}, 1.0, v{16+k}")
        for k in range(4): A(f"v_rcp_f32 v{16+k}, v{16+k}")
        for k in range(4): A(f"v_mul_f32 v{GG+4*k+j}, v{16+k}, v{XN_+4*j+k}")
        for k in range(4): A(f"v_fma_f32 v{CC+4*k+j}, v{20+k}, v{GG+4*k+j}, v{X_+4*j+k}")
A(f"""s_cmp_gt_u32 s6, 85
s_cbranch_scc1 NOF3""")
for i in range(16): A(f"v_mov_b32 v{208+i}, 0")
A(f"""v_lshl_add_u32 v8, v13, 1, v12
v_lshlrev_b32 v8, 4, v8
s_lshl_b32 s42, s7, 8
s_add_u32 s42, s42, {FRED}
v_add_u32 v8, s42, v8
v_and_b32 v9, 1, v0
v_lshl_add_u32 v9, v13, 1, v9
v_lshlrev_b32 v9, 4, v9
v_bfe_u32 v10, v0, 1, 2
v_lshl_add_u32 v9, v10, 2, v9
v_add_u32 v9, {FRED}, v9
v_bfe_i32 v10, v0, 1, 1
v_lshrrev_b32 v16, 1, v12
v_lshl_add_u32 v16, v16, 2, v13
v_lshlrev_b32 v16, 4, v16
v_and_b32 v17, 1, v0
v_lshl_add_u32 v16, v17, 11, v16
s_lshl_b32 s42, s6, 12
s_lshl_b32 s43, s7, 9
s_add_u32 s42, s42, s43
s_add_u32 s42, s42, {PART}
v_add_u32 v16, s42, v16
s_waitcnt vmcnt(0)""")
stamp(7)
A(f"""v_and_b32 v203, s56, v202
v_lshlrev_b32 v202, 16, v202
v_rcp_f32 v203, v203
v_lshlrev_b32 v204, 16, v200
v_and_b32 v205, s56, v200
v_lshlrev_b32 v206, 16, v201
v_and_b32 v207, s56, v201
v_pk_add_f32 v[204:205], v[204:205], v[202:203] op_sel_hi:[1,0] neg_lo:[0,1] neg_hi:[0,1]
v_pk_add_f32 v[206:207], v[206:207], v[202:203] op_sel_hi:[1,0] neg_lo:[0,1] neg_hi:[0,1]
v_cvt_pk_bf16_f32 v200, v204, v205
v_cvt_pk_bf16_f32 v201, v206, v207
v_lshlrev_b32 v204, 16, v200
v_and_b32 v205, s56, v200
v_lshlrev_b32 v206, 16, v201
v_and_b32 v207, s56, v201
v_pk_mul_f32 v[204:205], v[202:203], v[204:205] op_sel:[1,0] op_sel_hi:[1,1]
v_pk_mul_f32 v[206:207], v[202:203], v[206:207] op_sel:[1,0] op_sel_hi:[1,1]
v_cvt_pk_bf16_f32 v{FB}, v204, v205
v_cvt_pk_bf16_f32 v{FB+1}, v206, v207""")
for s in range(1, 8):
    for h in range(2):
        A(f"v_mov_b32_dpp v{FB+2*s+h}, v{FB+h} row_shl:{2*s} row_mask:0xf bank_mask:0xf bound_ctrl:0")
A("s_waitcnt lgkmcnt(0)")
for c in range(4):
    for m in range(2):
        A(f"v_mfma_f32_16x16x32_bf16 {vr(FDG+4*m,4)}, {vr(FA+16*m+4*c,4)}, {vr(FB+4*c,4)}, " + ("0" if c == 0 else vr(FDG+4*m,4)))
A(f"""s_mov_b32 s42, 0x00030003
s_mov_b32 s43, 0x00030003
s_mov_b64 exec, s[42:43]
ds_write_b128 v8, {vr(FDG,4)}
ds_write_b128 v8, {vr(FDG+4,4)} offset:128""")
signal(C_F, vM, vOne)
if OPT["dbg"]:
    A(f"""s_lshl_b32 s42, s6, 2
    s_add_u32 s42, s42, s7
    s_lshl_b32 s42, s42, 14
    s_add_u32 s42, s42, 0x900000
    v_lshl_add_u32 v230, v0, 2, s42""")
    regs = list(range(FA, FA+32)) + list(range(FB, FB+16)) + list(range(FDG, FDG+8))
    for i, r in enumerate(regs):
        A(f"global_store_dword v230, v{r}, s[40:41] offset:{256*(i%16)}")
        if i % 16 == 15: A("v_add_u32 v230, 4096, v230")
    A("s_waitcnt vmcnt(0)")
spin(C_F, 4, vM, vT, extra="\n".join(f"ds_read_b32 v{FB+2*w+m}, v9 offset:{256*w+128*m}" for w in range(4) for m in range(2)))
if OPT["dbg"]:
    for i in range(8): A(f"global_store_dword v230, v{FB+i}, s[40:41] offset:{256*(8+i)}")
    A("s_waitcnt vmcnt(0)")
A(f"""v_pk_add_f32 {vr(FB,2)}, {vr(FB,2)}, {vr(FB+2,2)}
v_pk_add_f32 {vr(FB+4,2)}, {vr(FB+4,2)}, {vr(FB+6,2)}
v_pk_add_f32 {vr(FB,2)}, {vr(FB,2)}, {vr(FB+4,2)}
v_cvt_pk_bf16_f32 v{FB}, v{FB}, v{FB+1}
v_lshlrev_b32 v{FB+1}, 16, v{FB}
v_mul_f32 v{FB+2}, {NLOG2E}, v{FB+1}
v_exp_f32 v{FB+2}, v{FB+2}
v_and_b32 v{FB}, s56, v{FB}
v_add_f32 v{FB+2}, 1.0, v{FB+2}
v_rcp_f32 v{FB+2}, v{FB+2}
v_mul_f32 v{FB+1}, v{FB+1}, v{FB+2}
v_cvt_pk_bf16_f32 v{FB+1}, v{FB+1}, v{FB+1}
v_and_b32 v{FB+1}, s56, v{FB+1}
v_mul_f32 v{FB}, v{FB}, v{FB+1}
v_mov_b32_dpp v{FB+1}, v{FB} quad_perm:[0,1,0,1] row_mask:0xf bank_mask:0xf
v_mov_b32_dpp v{FB+2}, v{FB} quad_perm:[2,3,2,3] row_mask:0xf bank_mask:0xf
v_cvt_pk_bf16_f32 v{FB}, v{FB+1}, v{FB+2}
v_and_b32 v{FB+1}, v10, v{FB}
v_bfi_b32 v{FB}, v10, 0, v{FB}""")
for c in range(4):
    for t in range(2):
        for i1 in range(2):
            own = (c & 1) == i1
            A(f"v_mov_b32_dpp v{208+4*c+2*t+i1}, v{FB+t} " + ("quad_perm:[0,1,2,3]" if own else "row_ror:4") + f" row_mask:0xf bank_mask:{hex(1<<c)}")
for c in range(4):
    A(f"v_mfma_f32_16x16x32_bf16 {vr(FDG,4)}, {vr(FD+4*c,4)}, {vr(208+4*c,4)}, " + ("0" if c == 0 else vr(FDG,4)))
for i in range(4): A(f"s_mov_b32 s{96+i}, {hex(0x07060500+i)}")
for i in range(4): A(f"v_perm_b32 v{FDG+i}, v{FDG+i}, v11, s{96+i}")
A(f"global_store_dwordx4 v16, {vr(FDG,4)}, s[40:41] sc1\ns_setprio 0")
stamp(8)
A("s_cmp_eq_u32 s53, 7\ns_mov_b32 s53, 8\ns_cbranch_scc1 DR1")
A.lab("NOF3")
A(f"""s_lshl_b32 s44, s54, 16
s_and_b32 s45, s54, s56
s_lshl_b32 s46, s55, 16
s_and_b32 s47, s55, s56""")
precompute()
A(f"""s_lshl_b32 s42, s51, 8
v_lshl_add_u32 v8, v7, 5, v4
v_add_u32 v8, s42, v8""")
for k in range(4):
    A(f"""v_add_u32 v9, {4*k}, v8
    v_cmp_ne_u32 vcc, s62, v9
    v_cmp_ne_u32 {sr(96)}, s63, v9
    s_and_b64 {sr(44+2*k) if k < 3 else sr(98)}, vcc, {sr(96)}""")
A(f"""s_lshl_b32 s42, s4, 3
s_add_u32 s42, s42, 4096
v_lshl_add_u32 v8, v8, 10, s42
v_add_u32 v9, 8192, v8
v_lshrrev_b32 v10, 2, v0
v_mul_u32_u24 v10, 272, v10
v_lshl_add_u32 v10, v5, 4, v10
s_mul_i32 s42, s7, {YBLK}
s_add_u32 s42, s42, {Y0}
v_add_u32 v10, s42, v10
s_lshl_b32 s42, s7, 2
v_add_u32 v14, s42, v{vM}""")
stamp(9)
spin(C_Y, 4, 14, vT, extra="\n".join(f"ds_read_b128 {vr(YY+4*k,4)}, v10 offset:{64*k}" for k in range(4)))
stamp(10)
for k in range(4):
    for h in range(2): A(f"v_pk_fma_f32 {vr(YY+4*k+2*h,2)}, {vr(YY+4*k+2*h,2)}, {vr(GG+4*k+2*h,2)}, {vr(CC+4*k+2*h,2)}")
    for h in range(2): A(f"v_cvt_pk_bf16_f32 v{YY+4*k+h}, v{YY+4*k+2*h}, v{YY+4*k+2*h+1}")
    A(f"s_mov_b64 exec, {sr(44+2*k) if k < 3 else sr(98)}")
    A(f"global_store_dwordx2 v{8+(k>>1)}, {vr(YY+4*k,2)}, s[36:37] offset:{-4096 if (k&1)==0 else 0}")
    A("s_mov_b64 exec, -1")
stamp(11)
A(f"""s_cmp_gt_u32 s7, 1
s_cbranch_scc1 FIN
s_cmp_eq_u32 s7, 0
s_cselect_b32 s60, s60, s61
s_cselect_b32 s62, s62, s63
s_lshr_b32 s42, s62, 8
s_add_u32 s43, s42, 6
s_and_b32 s43, s43, 7
s_lshr_b32 s44, s43, 2
s_cmp_eq_u32 s44, s5
s_cbranch_scc1 FIN
s_and_b32 s44, s42, 3
s_cmp_eq_u32 s5, 0
s_cselect_b32 s43, s44, s43""")
A(f"""s_lshl_b32 s44, s62, 10
s_lshl_b32 s45, s4, 3
s_add_u32 s44, s44, s45
v_lshl_add_u32 v8, v13, 1, s44
global_load_ushort v16, v8, s[8:9]
s_lshr_b32 s44, s62, 5
s_lshl_b32 s44, s44, 2
s_bfe_u32 s46, s62, 0x20002
s_add_u32 s44, s44, s46
s_lshl_b32 s44, s44, {KST-4}
s_and_b32 s46, s60, 1
s_add_u32 s44, s44, s46
s_lshl_b32 s44, s44, 4
s_add_u32 s44, s44, s57
v_mov_b32 v9, s44
global_load_dword v17, v9, s[40:41] offset:4 sc1
v_lshl_add_u32 v9, v13, 1, s45
global_load_ushort v18, v9, s[24:25]
s_lshl_b32 s44, s7, 11
s_lshl_b32 s45, s4, 4
s_add_u32 s44, s44, s45
s_add_u32 s44, s44, {PART}
v_lshl_add_u32 v9, v0, 12, s44
v_add_u32 v10, 64, v0
v_min_u32 v10, 85, v10
v_lshl_add_u32 v10, v10, 12, s44
s_mul_i32 s44, s43, {YBLK}
s_add_u32 s44, s44, {Y0}
s_bfe_u32 s45, s62, 0x40004
s_mul_i32 s45, s45, 272
s_add_u32 s44, s44, s45
s_and_b32 s45, s62, 15
s_lshl_b32 s45, s45, 4
s_add_u32 s44, s44, s45
v_lshl_add_u32 v15, v13, 2, s44
s_lshl_b32 s44, s43, 2
v_add_u32 v14, s44, v{vM}
s_ashr_i32 s44, s60, 31
s_orn2_b32 s44, 0x80000000, s44
s_xor_b32 s44, s44, s60
s_and_b32 s44, s44, s56
v_mov_b32 v19, {NLOG2E}
v_mul_f32 v19, s44, v19
v_exp_f32 v19, v19
s_mov_b32 s46, 0x0c0c0400
s_mov_b32 s47, 0x04000c0c
v_add_f32 v19, 1.0, v19
v_rcp_f32 v19, v19
s_waitcnt vmcnt(0)
v_cvt_pk_bf16_f32 v19, v19, v19
v_and_b32 v19, s56, v19
v_lshlrev_b32 v16, 16, v16
v_lshlrev_b32 v18, 16, v18
v_and_b32 v20, s56, v17
v_lshlrev_b32 v17, 16, v17
v_rcp_f32 v20, v20
v_sub_f32 v17, v16, v17
v_cvt_pk_bf16_f32 v17, v17, v17
v_and_b32 v17, s56, v17
v_mul_f32 v17, v17, v20
v_cvt_pk_bf16_f32 v17, v17, v17
v_and_b32 v17, s56, v17
v_mul_f32 v18, v18, v17
v_cvt_pk_bf16_f32 v18, v18, v18
v_and_b32 v18, s56, v18
s_mov_b32 s48, 0
PPOLL:
global_load_dwordx4 v[24:27], v9, s[40:41] sc1
global_load_dwordx4 v[28:31], v10, s[40:41] sc1
s_add_u32 s48, s48, 1
s_waitcnt vmcnt(0)
v_perm_b32 v20, v25, v24, s46
v_perm_b32 v21, v27, v26, s47
v_perm_b32 v22, v29, v28, s46
v_perm_b32 v23, v31, v30, s47
v_or_b32 v20, v20, v21
v_or_b32 v22, v22, v23
v_cmp_ne_u32 vcc, v20, v11
v_cmp_ne_u32 s[44:45], v22, v11
s_or_b64 vcc, vcc, s[44:45]
s_cmp_gt_u32 s48, {TIMEOUT}
s_cbranch_scc1 PDONE
s_cbranch_vccnz PPOLL
PDONE:""")
stamp(12)
A(f"""s_mov_b64 exec, 0x3fffff
v_pk_add_f32 v[24:25], v[24:25], v[28:29]
v_pk_add_f32 v[26:27], v[26:27], v[30:31]
s_mov_b64 exec, -1
v_permlane32_swap_b32 v24, v26
v_permlane32_swap_b32 v25, v27
v_add_f32 v24, v24, v26
v_add_f32 v25, v25, v27
v_permlane16_swap_b32 v24, v25
v_add_f32 v24, v24, v25
v_add_f32_dpp v24, v24, v24 row_ror:8 row_mask:0xf bank_mask:0xf
v_add_f32_dpp v24, v24, v24 row_ror:4 row_mask:0xf bank_mask:0xf
v_add_f32_dpp v24, v24, v24 row_ror:2 row_mask:0xf bank_mask:0xf
v_add_f32_dpp v24, v24, v24 row_ror:1 row_mask:0xf bank_mask:0xf
v_cvt_pk_bf16_f32 v24, v24, v24
v_and_b32 v24, s56, v24
v_mul_f32 v24, v24, v19
v_cvt_pk_bf16_f32 v24, v24, v24
v_and_b32 v24, s56, v24
v_add_f32 v24, v24, v17
v_cvt_pk_bf16_f32 v24, v24, v24
v_and_b32 v24, s56, v24
v_mul_f32 v25, {NLOG2E}, v24
v_exp_f32 v25, v25
v_add_f32 v25, 1.0, v25
v_rcp_f32 v25, v25
v_mul_f32 v24, v24, v25
v_cvt_pk_bf16_f32 v24, v24, v24
v_and_b32 v24, s56, v24""")
spin(C_Y, 4, 14, vT, extra="ds_read_b32 v26, v15")
A(f"""v_cvt_pk_bf16_f32 v26, v26, v26
v_and_b32 v26, s56, v26
v_add_f32 v26, v26, v18
v_cvt_pk_bf16_f32 v26, v26, v26
v_and_b32 v26, s56, v26
v_mul_f32 v26, v26, v24
v_cvt_pk_bf16_f32 v26, v26, v26
v_and_b32 v26, s56, v26
v_add_f32 v26, v26, v16
v_cvt_pk_bf16_f32 v26, v26, v26
s_mov_b32 s44, 0x00010001
s_mov_b32 s45, 0x00010001
s_mov_b64 exec, s[44:45]
global_store_short v8, v26, s[36:37]
s_mov_b64 exec, -1""")
stamp(13)
A.lab("FIN")
if STAMPS:
    A("s_waitcnt vmcnt(0)")
    stamp(14)
stamp_flush()
A("s_endpgm")

A.lab("SERV")
if OPT["wpf"] == 5: A("s_waitcnt vmcnt(0)"); iopf()
A(f"""s_mov_b32 s53, 7
s_mov_b32 s42, {W0}
s_mov_b32 s43, {WD}
s_waitcnt vmcnt(0)""")
stamp(13)
A.lab("SVL")
for i in range(4):
    A(f"""s_mov_b32 m0, s42
    s_add_u32 s44, s42, 16384
    global_load_lds_dwordx4 v240, s[30:31]
    s_mov_b32 m0, s44
    s_add_u32 s42, s42, 1024
    global_load_lds_dwordx4 v240, s[32:33]
    v_add_u32 v240, {32*2752}, v240""")
for i in range(4):
    A(f"""s_mov_b32 m0, s43
    s_add_u32 s43, s43, {WDS}
    global_load_lds_dwordx4 v241, s[34:35]
    v_add_u32 v241, {4096 if i < 3 else 256-3*4096}, v241""")
A(f"s_cmp_lt_u32 s42, {W0+16384}\ns_cbranch_scc1 SVL")
stamp(12)
A.lab("KEYSR")
A(f"""v_lshlrev_b32 v18, {KST}, v0
v_add_u32 v18, s62, v18
v_add_u32 v19, {64<<KST}, v18
v_add_u32 v20, {128<<KST}, v18
v_add_u32 v21, {192<<KST}, v18
s_mov_b32 s48, 0
KPOLL:""")
for i in range(8):
    A(f"global_load_dwordx3 {vr(KV+4*i,3)}, v{18+(i>>1)}, s[40:41] offset:{16*(i&1)} sc1")
A(f"""s_add_u32 s48, s48, 1
s_waitcnt vmcnt(0)
v_min3_u32 v16, v{KV+2}, v{KV+6}, v{KV+10}
v_max3_u32 v17, v{KV+2}, v{KV+6}, v{KV+10}
v_min3_u32 v16, v16, v{KV+14}, v{KV+18}
v_max3_u32 v17, v17, v{KV+14}, v{KV+18}
v_min3_u32 v16, v16, v{KV+22}, v{KV+26}
v_max3_u32 v17, v17, v{KV+22}, v{KV+26}
v_min3_u32 v16, v16, v{KV+30}, v11
v_max3_u32 v17, v17, v{KV+30}, v11
s_cmp_gt_u32 s48, {TIMEOUT}
v_cmp_ne_u32 vcc, v16, v17
s_cbranch_scc1 KDONE
s_and_b64 exec, exec, vcc
s_cbranch_execnz KPOLL
KDONE:
s_mov_b64 exec, -1""")
def k1(p): return KV+8*p
def k2(p): return KV+8*p+4
for a, b in ((0,1),(2,3),(0,2)):
    A(f"""v_min_u32 v16, v{k1(a)}, v{k1(b)}
    v_max_u32 v{k1(a)}, v{k1(a)}, v{k1(b)}
    v_max3_u32 v{k2(a)}, v{k2(a)}, v{k2(b)}, v16""")
m1, m2 = k1(0), k2(0)
for pat in ("quad_perm:[1,0,3,2]", "quad_perm:[2,3,0,1]", "row_half_mirror", "row_mirror"):
    A(f"""v_min_u32_dpp v16, v{m1}, v{m1} {pat} row_mask:0xf bank_mask:0xf
    v_max_u32_dpp v{m1}, v{m1}, v{m1} {pat} row_mask:0xf bank_mask:0xf
    v_max_u32_dpp v{m2}, v{m2}, v{m2} {pat} row_mask:0xf bank_mask:0xf
    v_max_u32 v{m2}, v{m2}, v16""")
for i in range(4): A(f"v_readlane_b32 s{96+i}, v{m1}, {16*i}")
for i in range(4): A(f"v_readlane_b32 s{60+i}, v{m2}, {16*i}")
for a, b in ((0,1),(2,3),(0,2)):
    A(f"""s_min_u32 s48, s{96+a}, s{96+b}
    s_max_u32 s{96+a}, s{96+a}, s{96+b}
    s_max_u32 s{60+a}, s{60+a}, s{60+b}
    s_max_u32 s{60+a}, s{60+a}, s48""")
A(f"""v_mov_b32 v16, s96
s_or_b32 s60, s60, 0x8000
v_mov_b32 v17, s60
ds_write_b64 v{vM}, v[16:17] offset:{SEL}
s_cmp_lg_u32 s2, 0
s_cbranch_scc1 KNOEP
v_mov_b32 v16, {EPOCH}
s_mov_b64 exec, 1
global_store_dword v16, v11, s[40:41] sc1
s_mov_b64 exec, -1
KNOEP:""")
stamp(15)
A("s_branch AFTK")

AF, ACC, XT, BB, RAW, DT = 16, 80, 144, 148, 180, 188
A.lab("KWAVE")
if OPT["cpf"]:
    A(f"""s_cmp_gt_u32 s43, 7
    s_cbranch_scc1 NOCPF
    s_getpc_b64 s[46:47]
    CPFL:
    s_lshl_b32 s45, s43, 2
    s_add_u32 s45, s45, s7
    s_and_b32 s45, s45, 7
    s_lshl_b32 s45, s45, 12
    v_lshl_add_u32 v20, v0, 6, s45
    v_min_u32 v20, END-{NAME}, v20
    s_sub_u32 s46, s46, CPFL-{NAME}
    s_subb_u32 s47, s47, 0
    global_load_dword v250, v20, s[46:47]
    NOCPF:""")
A(f"""v_mov_b32 v4, 0
v_mov_b32 v5, 0
v_mov_b32 v6, 0
v_mov_b32 v7, 0
v_lshlrev_b32 v8, 2, v0
v_add_u32 v8, {MISC}, v8
ds_write_b32 v8, v4""")
A(f"""v_and_b32 v12, 15, v0
v_lshrrev_b32 v13, 4, v0
s_mul_i32 s51, s7, {UCH}
s_add_u32 s51, s51, {U0}
v_mul_u32_u24 v8, {UPH}, v13
v_lshl_add_u32 v8, v12, 3, v8
v_add_u32 v8, s51, v8
ds_write_b64 v8, v[4:5]
s_lshl_b32 s42, s4, 2
s_add_u32 s42, s42, s7
s_lshl_b32 s43, s42, 8
v_lshl_add_u32 v8, v0, 2, s43
s_lshl_b32 s43, s42, 1
s_and_b32 s43, s43, -4
s_waitcnt lgkmcnt(0)
s_load_dword s44, s[22:23], s43""")
for i in range(6): A(f"global_load_dword v{RAW+i}, v8, s[{10+2*i}:{11+2*i}]")
def wpf():
    A(f"""s_lshr_b32 s45, s2, 3
    s_and_b32 s46, s2, 7
    s_lshl_b32 s47, s45, 1
    s_and_b32 s48, s7, 1
    s_add_u32 s47, s47, s48
    s_mul_i32 s47, s47, {8*2752}
    s_mul_i32 s48, s46, 352
    s_add_u32 s47, s47, s48
    v_lshrrev_b32 v20, 3, v0
    v_mul_u32_u24 v20, 2752, v20
    v_and_b32 v22, 7, v0
    v_lshlrev_b32 v22, 6, v22
    v_min_u32 v22, 348, v22
    v_add3_u32 v20, v20, v22, s47
    v_min_u32 v20, {512*2752-4}, v20
    s_cmp_lt_u32 s7, 2
    s_cselect_b32 s48, s30, s32
    s_cselect_b32 s49, s31, s33
    global_load_dword v251, v20, s[48:49]
    s_lshl_b32 s45, s45, 2
    s_add_u32 s45, s45, s7
    s_mul_i32 s45, s45, 1408
    s_mul_i32 s46, s46, {176*1024}
    s_add_u32 s45, s45, s46
    v_min_u32 v22, 21, v0
    v_lshl_add_u32 v22, v22, 6, s45
    v_min_u32 v22, {1376*1024-4}, v22
    global_load_dword v252, v22, s[34:35]""")
if OPT["wpf"] == 1: wpf()

A(f"""s_barrier
s_mul_i32 s50, s7, {STG}
s_mov_b32 m0, s50
v_mov_b32 v{vM}, {MISC}
v_mov_b32 v{vOne}, 1
v_mov_b32 v8, 0x3f80
ds_write_addtid_b32 v8 offset:0
v_mul_u32_u24 v9, 272, v12
v_lshl_add_u32 v9, v13, 4, v9
v_add_u32 v9, s50, v9
s_waitcnt lgkmcnt(0)
s_lshl_b32 s45, s44, 16
s_and_b32 s44, s44, s56
s_bitcmp1_b32 s42, 0
s_cselect_b32 s44, s44, s45
v_mov_b32 v8, {LOG2E}
v_mul_f32 v8, s44, v8
v_exp_f32 v8, v8
s_mov_b32 s52, 0x01000c0c
s_mov_b32 s53, 0
v_cvt_pk_bf16_f32 v8, v8, v8
v_and_b32 v8, s56, v8
v_mul_f32 v10, {LOG2E}, v8
v_mul_f32 v11, {INV2PI}, v8""")
for i in range(12): A(f"v_mov_b32 v{DT+i}, 0")
A("s_waitcnt vmcnt(2)" if OPT["wpf"] == 1 else "s_waitcnt vmcnt(0)")
stamp(1)
if OPT["wpf"] == 2: wpf()
A.lab("KLOOP")
Z = 80
Z8, Z128 = 96, 98
T = 100
for i in range(6): A(f"v_perm_b32 v{T+i}, v{RAW+i}, v{RAW+i}, s52")
A(f"""v_mul_f32 v{T}, v{T}, v10
v_mul_f32 v{T+1}, v{T+1}, v11
v_pk_mul_f32 {vr(T+6,2)}, {vr(T+4,2)}, {vr(T+2,2)} op_sel:[0,0] op_sel_hi:[0,1] neg_hi:[0,1]
v_mul_f32 v{T+8}, 0x41000000, v{T}
v_mul_f32 v{T+9}, 0x41000000, v{T+1}
v_mul_f32 v{T+10}, 0x43000000, v{T}
v_mul_f32 v{T+11}, 0x43000000, v{T+1}
v_pk_fma_f32 {vr(T+6,2)}, {vr(T+4,2)}, {vr(T+2,2)}, {vr(T+6,2)} op_sel:[1,1,0] op_sel_hi:[1,0,1] neg_lo:[0,1,0] neg_hi:[0,1,0]
v_fract_f32 v{T+1}, v{T+1}
v_fract_f32 v{T+9}, v{T+9}
v_fract_f32 v{T+11}, v{T+11}
v_exp_f32 v{T}, v{T}
v_exp_f32 v{T+8}, v{T+8}
v_exp_f32 v{T+10}, v{T+10}
v_cos_f32 v{Z+2}, v{T+1}
v_sin_f32 v{Z+3}, v{T+1}
v_cos_f32 v{Z8}, v{T+9}
v_sin_f32 v{Z8+1}, v{T+9}
v_cos_f32 v{Z128}, v{T+11}
v_sin_f32 v{Z128+1}, v{T+11}
v_pk_mul_f32 {vr(T+6,2)}, {vr(T+6,2)}, v[8:9] op_sel_hi:[1,0]
v_pk_mul_f32 {vr(Z+2,2)}, {vr(Z+2,2)}, {vr(T,2)} op_sel_hi:[1,0]
v_pk_mul_f32 {vr(Z8,2)}, {vr(Z8,2)}, {vr(T+8,2)} op_sel_hi:[1,0] neg_hi:[1,0]
v_pk_mul_f32 {vr(Z128,2)}, {vr(Z128,2)}, {vr(T+10,2)} op_sel_hi:[1,0]""")
def cm(o, w, z): return [f"v_pk_mul_f32 {vr(o,2)}, {vr(w,2)}, {vr(z,2)} op_sel:[0,0] op_sel_hi:[0,1]",
                         f"v_pk_fma_f32 {vr(o,2)}, {vr(w,2)}, {vr(z,2)}, {vr(o,2)} op_sel:[1,1,0] op_sel_hi:[1,0,1] neg_lo:[0,1,0]"]
cv = [0]
def emit_row(src, row):
    r = 140 + (cv[0] % 4); cv[0] += 1
    return [f"v_cvt_pk_bf16_f32 v{r}, v{src}, v{src+1}", f"ds_write_addtid_b32 v{r} offset:{272*row}"]
sB = emit_row(T+6, 41)
bb = [T+6, T+12]
for j in range(1, 16):
    sB += cm(bb[j&1], bb[(j-1)&1], Z8) + emit_row(bb[j&1], 41+j)
PP = 114
def preg(a): return Z128 if a == 1 else (PP+2*(a-2) if a <= 7 else 126+2*(a&1))
def prow(a): return {1:8, 2:16, 3:20, 4:24, 5:26, 6:28, 7:30}.get(a, 32+a-8)
sP = emit_row(Z128, 8)
for a in range(2, 17):
    sP += cm(preg(a), preg(a-1), Z128) + emit_row(preg(a), prow(a))
sZ = emit_row(Z+2, 1)
for b, (p, q) in {2:(1,1), 3:(2,1), 4:(2,2), 5:(4,1), 6:(4,2), 7:(4,3)}.items():
    sZ += cm(Z+2*b, Z+2*p, Z+2*q) + emit_row(Z+2*b, b)
tq = [130, 132, 134, 136]; ti = 0
prods = [(1,b,8+b) for b in range(1,8)] + [(2,2*b,16+b) for b in (1,2,3)] + [(3,2*b,20+b) for b in (1,2,3)] + [(a,4,prow(a)+1) for a in (4,5,6,7)]
sQ = []
for a, b, row in prods:
    o = tq[(ti % 2) + (2 if ti >= 8 else 0)]; ti += 1
    sQ.append(cm(o, preg(a), Z+2*b) + emit_row(o, row))
sZ += sum(sQ[:8], [])
sR = sum(sQ[8:], [])
def retemp(stream, base):
    out = []; n = 0; cur = None
    for t in stream:
        if t.startswith("v_cvt_pk"):
            cur = base + (n & 1); n += 1
            p = t.split(); t = f"{p[0]} v{cur}, {p[2]} {p[3]}"
        elif t.startswith("ds_write_addtid"):
            p = t.split(); t = f"{p[0]} v{cur} {p[2]}"
        out.append(t)
    return out
sB = retemp(sB, 138); sP = retemp(sP, 140); sZ = retemp(sZ, 142); sR = retemp(sR, 144)
streams = [sB, sP, sZ]; pos = [0,0,0,0]; rnd = 0
while True:
    if rnd == 30: streams.append(sR)
    any_ = False
    for i, s in enumerate(streams):
        if pos[i] < len(s): A(s[pos[i]]); pos[i] += 1; any_ = True
    rnd += 1
    if not any_ and rnd > 30: break
for c in range(4):
    for t, row in ((3, 41), (0, 0), (1, 16), (2, 32)):
        A(f"ds_read_b128 {vr(AF+16*c+4*t,4)}, v9 offset:{272*row+64*c}")
A("s_mov_b32 s52, 0x03020c0c\ns_add_u32 s53, s53, 1")
for c in range(4):
    A(f"s_waitcnt lgkmcnt({12-4*c})")
    for t in range(3):
        A(f"v_mfma_f32_16x16x32_bf16 {vr(DT+4*t,4)}, {vr(AF+16*c+4*t,4)}, {vr(AF+16*c+12,4)}, {vr(DT+4*t,4)}")
A("s_cmp_lt_u32 s53, 2\ns_cbranch_scc1 KLOOP")
stamp(2)
D0, D1, D2 = DT, DT+4, DT+8
A(f"""v_lshl_add_u32 v8, v12, 4, s50
v_lshl_add_u32 v10, v13, 10, v8
v_lshl_add_u32 v11, v13, 9, v8
v_lshl_add_u32 v14, v13, 8, v8
v_lshrrev_b32 v15, 1, v13
v_lshl_add_u32 v15, v15, 8, v8
v_and_b32 v9, 1, v13
v_lshl_add_u32 v15, v9, 3, v15
v_lshl_add_u32 v9, v0, 3, s50""")
E = 100
for i in range(4):
    A(f"v_mov_b32_dpp v{E+16+i}, v{D2+i} quad_perm:[0,0,2,2] row_mask:0xf bank_mask:0xf")
for i in range(4):
    A(f"v_cvt_pk_bf16_f32 v{E+4*i}, v{E+16+i}, v{D2+i}")
    for q in range(1, 4): A(f"v_cvt_pk_bf16_f32 v{E+4*i+q}, v{D2+i}, v{D2+i}")
A("s_mov_b32 exec_hi, 1")
for i in range(4):
    A(f"ds_write_b128 v10, {vr(E+4*i,4)} offset:{KXO+2*(1024+128*i-4)}")
    if i == 0: A("s_mov_b32 exec_hi, 0")
A("s_mov_b64 exec, -1")
E2 = 120
for h in range(2):
    a, b = D1+2*h, D1+2*h+1
    A(f"""v_cvt_pk_bf16_f32 v{E2+4*h}, v{a}, v{a}
    v_cvt_pk_bf16_f32 v{E2+4*h+1}, v{a}, v{a}
    v_cvt_pk_bf16_f32 v{E2+4*h+2}, v{a}, v{b}
    v_cvt_pk_bf16_f32 v{E2+4*h+3}, v{b}, v{b}""")
A(f"""v_cvt_pk_bf16_f32 v{E2+8}, v{D1}, v{D1}
v_cvt_pk_bf16_f32 v{E2+9}, v{D1}, v{D1+1}
v_cvt_pk_bf16_f32 v{E2+10}, v{D1+2}, v{D1+2}
v_cvt_pk_bf16_f32 v{E2+11}, v{D1+2}, v{D1+3}
v_cvt_pk_bf16_f32 v{E2+12}, v{D0}, v{D0+1}
v_cvt_pk_bf16_f32 v{E2+13}, v{D0+2}, v{D0+3}
s_mov_b32 exec_lo, 0
ds_write_b128 v11, {vr(E2,4)} offset:{KXO-4}
ds_write_b128 v11, {vr(E2+4,4)} offset:{KXO-4+256}
s_mov_b32 exec_lo, -1
s_mov_b32 exec_hi, 0
ds_write_b128 v14, {vr(E2+8,4)} offset:{KXO+2*(256-1)}
s_mov_b64 exec, 31
ds_write_b64 v9, v[4:5]
s_mov_b64 exec, -1
ds_write_b64 v15, {vr(E2+12,2)} offset:{KXO}""")
A(f"""v_and_b32 v8, 3, v0
v_lshrrev_b32 v9, 2, v12
v_sub_u32 v9, v8, v9
v_lshlrev_b32 v9, 3, v9
v_lshlrev_b32 v10, 6, v13
v_sub_u32 v9, v9, v10
s_add_u32 s42, s50, {KXO+192}
v_add_u32 v9, s42, v9""")
for q in range(16):
    for h in range(2):
        A(f"ds_read_b64_tr_b16 {vr(AF+4*q+2*h,2)}, v9 offset:{256*q+32-32*h}")
A(f"""v_lshlrev_b32 v10, 3, v12
v_lshl_add_u32 v10, v13, 4, v10
s_add_u32 s42, s51, 8
v_add_u32 v10, s42, v10
v_mul_u32_u24 v11, {UPH}, v8
v_lshl_add_u32 v11, v13, 4, v11
s_add_u32 s42, s51, 128
v_add_u32 v11, s42, v11
v_mul_u32_u24 v14, 272, v12
v_lshl_add_u32 v14, v13, 6, v14
s_lshl_b32 s42, s7, 2
s_add_u32 s42, s42, {Y0}
v_add_u32 v14, s42, v14
v_cmp_gt_u32 vcc, 16, v0
v_add_u32 v15, 47, v0
v_subrev_u32 v9, 16, v0
v_cndmask_b32 v15, v9, v15, vcc
v_writelane_b32 v15, -1, 0
s_add_u32 s42, s50, {CAR}
v_lshl_add_u32 v15, v15, 4, s42
v_lshl_add_u32 v8, v0, 4, s42
v_lshl_add_u32 v9, v0, 2, s42
v_subrev_u32 v9, 256, v9
s_mov_b64 exec, 1
ds_write_b128 v15, v[4:7]
s_mov_b64 exec, -1""")
stamp(3)
A("s_sub_u32 s57, 4, s5")
spin(C_U, "s57", vM, vT)
stamp(4)
A("s_setprio 1\ns_cmp_eq_u32 s5, 1\ns_cbranch_scc1 CONV1")

def conv(blocks, coff, nbx, xloc, xpos):
    items = []
    emax = 2*max(blocks)
    for e in range(-1, emax+1):
        for rho in range(4):
            ms = [(ACC+16*i+4*rho, 2*nb-e, e == -1) for i, nb in reversed(list(enumerate(blocks))) if e <= 2*nb]
            done = [i for i, nb in enumerate(blocks) if e == 2*nb and rho == 3]
            items.append(dict(kind="b", off=rho*UPH+64*(e+1), ms=ms, done=done))
    xi = [dict(kind="x", off=64*t, ms=[(XT, 2*nbx-1-t, t == 0)], done=(["x"] if t == 2*nbx-1 else [])) for t in range(2*nbx)]
    out = items[:xpos]; rest = items[xpos:]
    while xi or rest:
        if xi: out.append(xi.pop(0))
        if rest: out.append(rest.pop(0))
    items = out
    fifo = []
    def ds(text, tag=None):
        A(text); fifo.append(tag)
    def loads(n):
        it = items[n]; b = BB + 4*(n % 8)
        if it["kind"] == "b":
            return [(f"ds_read_b64 {vr(b,2)}, v10 offset:{it['off']}", n), (f"ds_read_b64 {vr(b+2,2)}, v10 offset:{it['off']+8}", n)]
        return [(f"ds_read_b128 {vr(b,4)}, v11 offset:{it['off']}", n)]
    def finish(i):
        if i == "x":
            return [f"v_add_f32_dpp v{XT+3}, v{XT+2}, v{XT+3} row_shl:1 row_mask:0xf bank_mask:0xf bound_ctrl:0",
                    f"v_add_f32_dpp v{XT+3}, v{XT+1}, v{XT+3} row_shl:2 row_mask:0xf bank_mask:0xf bound_ctrl:0",
                    f"s_mov_b32 exec_lo, 0|s_mov_b32 exec_hi, 0xe0000000|ds_write_b32 v9, v{XT+3} offset:{coff[xloc]}|s_mov_b64 exec, -1"]
        d = [ACC+16*i+4*r for r in range(4)]
        o = i*YBLK; t = 184
        return [f"v_add_f32 v{d[3]+1}, v{d[3]+1}, v{d[2]+2}",
                f"v_add_f32 v{d[3]+2}, v{d[3]+2}, v{d[2]+3}",
                f"v_add_f32 v{d[3]+1}, v{d[3]+1}, v{d[1]+3}",
                f"v_add_f32 v{d[0]+3}, v{d[0]+3}, v{d[1]+2}",
                f"ds_write_b128 v8, {vr(d[3],4)} offset:{coff[i]}",
                f"ds_read_b128 {vr(t,4)}, v15 offset:{coff[i]}@c{i}",
                f"v_add_f32 v{d[0]+1}, v{d[0]+1}, v{d[1]}",
                f"v_add_f32 v{d[0]+3}, v{d[0]+3}, v{d[2]+1}",
                f"v_add_f32 v{d[0]+2}, v{d[0]+2}, v{d[1]+1}",
                f"v_add_f32 v{d[0]+3}, v{d[0]+3}, v{d[3]}",
                f"v_add_f32 v{d[0]+2}, v{d[0]+2}, v{d[2]}",
                f"ds_write_b32 v14, v{d[0]+3} offset:{o+48}",
                "", "", "", "", "", "",
                f"#c{i}|v_add_f32 v{d[0]}, v{d[0]}, v{t+1}",
                f"v_add_f32 v{d[0]+1}, v{d[0]+1}, v{t+2}",
                f"v_add_f32 v{d[0]+2}, v{d[0]+2}, v{t+3}",
                f"ds_write_b32 v14, v{d[0]} offset:{o}",
                f"ds_write_b32 v14, v{d[0]+1} offset:{o+16}",
                f"ds_write_b32 v14, v{d[0]+2} offset:{o+32}",
                f"s_mov_b64 exec, 1|ds_add_u32 v{vM}, v{vOne} offset:{C_Y+4*i}|s_mov_b64 exec, -1"]
    def wait(tag):
        ks = [k for k, t in enumerate(fifo) if t == tag]
        if not ks: return
        A(f"s_waitcnt lgkmcnt({min(len(fifo)-1-ks[-1],15)})")
        del fifo[:ks[-1]+1]
    DEPTH = 6
    lq = []; nl = 0; fq = []
    def emit_f(t):
        for p in t.split("|"):
            if p == "": continue
            if p.startswith("#"): wait(p[1:])
            elif p.startswith("ds_"): ds(*p.split("@"))
            else: A(p)
    for n in range(min(DEPTH, len(items))):
        for t, tag in loads(n): ds(t, tag)
    nl = min(DEPTH, len(items)); mc = 0
    for n, it in enumerate(items):
        while lq and lq[0][1] <= n: ds(*lq.pop(0))
        wait(n)
        if nl < len(items) and nl <= n + DEPTH: lq += loads(nl); nl += 1
        b = BB + 4*(n % 8)
        for acc, q, first in it["ms"]:
            A(f"v_mfma_f32_16x16x32_bf16 {vr(acc,4)}, {vr(AF+4*q,4)}, {vr(b,4)}, " + ("0" if first else vr(acc,4)))
            mc += 1
            for _ in range(2):
                if lq: ds(*lq.pop(0))
                elif fq and fq[0][0] <= mc: emit_f(fq.pop(0)[1])
        for i in it["done"]:
            fq += [(mc+3, t) for t in finish(i)]
    for _, t in fq: emit_f(t)
conv([0,1,6,7], [0, 1024, 2064, 3088], 6, 2, 16)
stamp(5)
stamp_flush()
A("s_endpgm")
A.lab("CONV1")
conv([2,3,4,5], [0, 1024, 2048, 3072], 2, 0, 2)
stamp(5)
stamp_flush()
A.lab("END")
A("s_endpgm")

n = A.fix(verbose=bool(OPT.get("v", 0)))
hdr = open("recurrent_scan__ssm_conv_s4__moe_arch_mod__prompt.s.ref").read().split("; Override launch")[0]
out = hdr + f"""; @launch grid=(256,1,1) block=(512,1,1) lds={LDS_TOTAL}
.amdgcn_target "amdgcn-amd-amdhsa--gfx950"
.text
.globl {NAME}
.p2align 8
.type {NAME},@function
{NAME}:
""" + A.text() + f""".section .rodata,"a"
.p2align 6
.amdhsa_kernel {NAME}
  .amdhsa_next_free_vgpr 256
  .amdhsa_next_free_sgpr 102
  .amdhsa_accum_offset 256
  .amdhsa_group_segment_fixed_size 0
  .amdhsa_kernarg_size 136
  .amdhsa_user_sgpr_count 2
  .amdhsa_user_sgpr_kernarg_segment_ptr 1
  .amdhsa_system_sgpr_workgroup_id_x 1
.end_amdhsa_kernel
"""
open(sys.argv[1], "w").write(out)
print("nops inserted", n, "lines", len(A.L), "lds", LDS_TOTAL)
```

```python
import sys, os
sys.path.insert(0, os.path.dirname(__file__))
from asmlib import Asm
NAME = "recurrent_scan__ssm_conv_s4__moe_arch_mod__prompt_kernel"
OPT = dict(stamps=0, dbg=0, cpf=1, iso=0, wpf=4, sw=1, nodma=0, dly=0, ffs=0, epk=0, pg=0, dw=3, touch=1, amp=0, ampi=0, ampj=0, wsb=0, fine=0)
for a in sys.argv[2:]:
    k, v = a.split("="); OPT[k] = int(v, 0)
STAMPS = OPT["stamps"]

KEYS = 0x480000; EPOCH = 0x408000; PART = 0x410000
STAMPW = 0x800000
STG = 15504
U0 = 4*STG; UPH = 1184; UCH = 4*UPH
Y0 = U0 + 4*UCH; YBLK = 4352
MISC = Y0 + 4*YBLK + 544
C_U, C_Y, C_ST, C_W, C_F, SEL = 0, 4, 20, 24, 28, 32
XCH = MISC + 64; FRED = XCH + 512
W0 = Y0 + 20480; WU = W0 + 16384; WD = W0 + 32768; WDS = 1056
LDS_TOTAL = WD + 16*WDS
CAR = 4368
KXO = 40
LOG2E = "0x3fb8aa3b"; NLOG2E = "0xbfb8aa3b"; INV2PI = "0x3e22f983"
TIMEOUT = 20000

A = Asm()
WSADD = f"s_add_u32 s40, s40, {OPT['wsb']<<20}\ns_addc_u32 s41, s41, 0" if OPT['wsb'] else ""
def vr(b, n): return f"v[{b}:{b+n-1}]"
def sr(b, n=2): return f"s[{b}:{b+n-1}]"
nstamp = [0]
def fs(i): return f"s_memrealtime s[{64+2*i}:{65+2*i}]" if OPT["fine"] else ""
def stamp(i):
    if OPT["fine"] and i >= 6: return
    if OPT["ffs"] and 9 <= i <= 14: return
    if STAMPS: A(f"s_memrealtime s[{64+2*i}:{65+2*i}]")
    if STAMPS and OPT["iso"] and i < 8: A(f"s_memtime s[{80+2*i}:{81+2*i}]")
def ffs(i):
    if OPT["ffs"]: A(f"s_memrealtime s[{64+2*i}:{65+2*i}]")
def stamp_flush(who):
    if not STAMPS: return
    if OPT["amp"]:
        if OPT["amp"] != who: return
        i, j = OPT["ampi"], OPT["ampj"]; l = A.newlab("AMP"); d = A.newlab("AMD")
        A(f"""s_waitcnt lgkmcnt(0)
        s_cmp_eq_u32 s{64+2*j}, 0
        s_cbranch_scc1 {d}
        s_sub_u32 s60, s{64+2*j}, s{64+2*i}
        s_min_u32 s60, s60, 3000
        s_mul_i32 s60, s60, 10
        s_memrealtime s[62:63]
        s_waitcnt lgkmcnt(0)
        s_add_u32 s60, s60, s62
        {l}:
        s_memrealtime s[62:63]
        s_waitcnt lgkmcnt(0)
        s_sub_u32 s61, s60, s62
        s_cmp_gt_i32 s61, 0
        s_cbranch_scc1 {l}
        {d}:""")
        return
    A(f"""s_lshl_b32 s60, s2, 3
    s_add_u32 s60, s60, s3
    s_lshl_b32 s60, s60, 7
    s_add_u32 s60, s60, {STAMPW}
    s_load_dwordx2 s[40:41], s[0:1], 128
    v_mov_b32 v1, s60
    s_mov_b64 exec, 1
    s_waitcnt lgkmcnt(0)""")
    for i in range(16):
        A(f"v_mov_b32 v2, s{64+2*i}\nv_mov_b32 v3, s{65+2*i}\nglobal_store_dwordx2 v1, v[2:3], s[40:41] offset:{8*i}")

def signal(off, vM, vOne):
    A(f"s_mov_b64 exec, 1\nds_add_u32 v{vM}, v{vOne} offset:{off}\ns_mov_b64 exec, -1")
def spin(off, target, vM, vT, extra="", nonzero=False):
    l = A.newlab("SPIN"); d = A.newlab("SPD")
    A(f"s_mov_b32 s59, 0")
    A.lab(l)
    A(f"ds_read_b32 v{vT}, v{vM} offset:{off}")
    if extra: A(extra)
    A(f"""s_add_u32 s59, s59, 1
    s_cmp_gt_u32 s59, {TIMEOUT*16}
    s_cbranch_scc1 {d}
    s_waitcnt lgkmcnt(0)
    v_readfirstlane_b32 s58, v{vT}""")
    A(f"s_cmp_eq_u32 s58, 0" if nonzero else f"s_cmp_lt_u32 s58, {target}")
    A(f"s_cbranch_scc1 {l}")
    A.lab(d)
    A("s_waitcnt lgkmcnt(0)")

vM, vOne, vT = 1, 2, 3
AF, ACC, XT, BB, RAW, DT = 16, 80, 144, 148, 180, 188
A(f"""s_cmp_ge_u32 s2, 256
s_cbranch_scc1 END
s_load_dwordx16 s[8:23], s[0:1], 0
s_load_dwordx16 s[24:39], s[0:1], 64
s_load_dwordx2 s[40:41], s[0:1], 128""")
stamp(0)
A(f"""s_getpc_b64 s[46:47]
PC0:
s_lshr_b32 s43, s2, 3
s_lshl_b32 s45, s43, 10
v_and_b32 v1, 0x1e0, v0
v_lshl_add_u32 v1, v1, 1, s45
v_min_u32 v1, END-PC0, v1
global_load_dword v250, v1, s[46:47]""")
if STAMPS:
    for i in range(1, 16): A(f"s_mov_b64 s[{64+2*i}:{65+2*i}], 0")
A(f"""v_lshrrev_b32 v1, 6, v0
v_and_b32 v0, 63, v0
v_readfirstlane_b32 s3, v1
s_and_b32 s42, s2, 7
s_and_b32 s44, s43, 15
s_lshr_b32 s5, s43, 4
s_lshl_b32 s4, s42, 4
s_add_u32 s4, s4, s44
s_and_b32 s7, s3, 3
s_mov_b32 s56, 0xffff0000
s_cmp_gt_u32 s3, 3
s_cbranch_scc1 IOF""")
A(f"""v_mov_b32 v4, 0
v_mov_b32 v5, 0
v_mov_b32 v6, 0
v_mov_b32 v7, 0
v_lshlrev_b32 v8, 2, v0
v_add_u32 v8, {MISC}, v8
ds_write_b32 v8, v4
v_and_b32 v12, 15, v0
v_lshrrev_b32 v13, 4, v0
s_mul_i32 s51, s7, {UCH}
s_add_u32 s51, s51, {U0}
v_mul_u32_u24 v8, {UPH}, v13
v_lshl_add_u32 v8, v12, 3, v8
v_add_u32 v8, s51, v8
ds_write_b64 v8, v[4:5]
s_mul_i32 s50, s7, {STG}
s_mov_b32 m0, s50
v_mov_b32 v{vM}, {MISC}
v_mov_b32 v{vOne}, 1
v_mov_b32 v8, 0x3f80
ds_write_addtid_b32 v8 offset:0
v_mul_u32_u24 v9, 272, v12
v_lshl_add_u32 v9, v13, 4, v9
v_add_u32 v9, s50, v9
s_lshl_b32 s42, s4, 2
s_add_u32 s42, s42, s7
s_lshl_b32 s43, s42, 8
v_lshl_add_u32 v8, v0, 2, s43
s_lshl_b32 s43, s42, 1
s_and_b32 s43, s43, -4
{fs(6)}
s_waitcnt lgkmcnt(0)
{fs(7)}
s_load_dword s44, s[22:23], s43""")
for i in range(6): A(f"global_load_dword v{RAW+i}, v8, s[{10+2*i}:{11+2*i}]")
A(f"""s_barrier
{fs(8)}
s_branch KG0""")

XA, XB, WR = 16, 24, 32
D = "row_mask:0xf bank_mask:0xf"
A(f"""IOF:
s_setprio 2
s_lshr_b32 s45, s2, 2
s_lshl_b32 s45, s45, 5
s_and_b32 s46, s2, 3
s_lshl2_add_u32 s45, s46, s45
v_and_b32 v4, 4, v0
v_and_b32 v5, 3, v0
v_lshl_or_b32 v4, v4, 2, v5
v_add_u32 v6, s45, v4
v_lshrrev_b32 v7, 3, v0
s_lshl_b32 s45, s7, 8
v_lshl_add_u32 v8, v7, 4, s45
v_lshl_add_u32 v9, v6, 10, v8
v_mov_b32 v10, {EPOCH}
s_lshl_b32 s48, s4, 3
{fs(6)}
s_waitcnt lgkmcnt(0)
{fs(7)}
global_load_dwordx4 {vr(XA,4)}, v9, s[8:9]
global_load_dwordx4 {vr(XB,4)}, v9, s[8:9] offset:128
global_load_dwordx4 {vr(WR,4)}, v8, s[28:29]
global_load_dwordx4 {vr(WR+4,4)}, v8, s[28:29] offset:128
{WSADD}
global_load_dword v11, v10, s[40:41] sc1
s_load_dwordx2 s[54:55], s[24:25], s48
s_barrier
{fs(8)}
s_mul_i32 s6, s42, 11
s_add_u32 s6, s6, s44
s_cmp_lt_u32 s44, 11
s_cselect_b32 s6, s6, 999
s_cmp_eq_u32 s5, 1
s_cselect_b32 s6, s6, 999
s_add_u32 s46, s7, 2
s_add_u32 s44, s7, 4
s_cmp_lt_u32 s7, 2
s_cselect_b32 s44, s7, s44
s_cselect_b32 s52, s7, 5
s_cmp_eq_u32 s5, 0
s_cselect_b32 s51, s44, s46
s_cselect_b32 s52, s46, s52
v_mov_b32 v{vM}, {MISC}
v_mov_b32 v{vOne}, 1
v_and_b32 v10, 7, v0
v_lshrrev_b32 v13, 4, v0
s_lshl_b32 s44, s7, 2
s_add_u32 s44, s44, {XCH}
v_lshl_add_u32 v8, v13, 4, s44
v_lshl_add_u32 v8, v10, 6, v8
v_lshlrev_b32 v14, 6, v10
v_add_u32 v14, {XCH}, v14
s_lshl_b32 s44, s7, 20
s_lshl_b32 s45, s2, 7
s_add_u32 s44, s44, s45
v_lshl_add_u32 v15, v7, 16, s44
v_lshl_add_u32 v15, v10, 4, v15
v_lshlrev_b32 v60, 9, v7
v_lshl_add_u32 v60, v10, 4, v60
s_lshl_b32 s47, s4, 15
s_lshl_b32 s44, s51, 12
s_add_u32 s44, s44, s47
v_add_u32 v236, s44, v60
s_lshl_b32 s44, s52, 12
s_add_u32 s44, s44, s47
v_add_u32 v235, s44, v60
v_lshl_add_u32 v4, v7, 5, v4
v_lshrrev_b32 v7, 2, v0
s_add_u32 s46, s48, 4096
s_lshl_b32 s44, s51, 18
s_add_u32 s44, s44, s46
v_lshl_add_u32 v243, v4, 10, s44
v_add_u32 v239, 8192, v243
v_and_b32 v12, 15, v0
s_lshl_b32 s46, s43, 2
s_add_u32 s46, s46, s7
v_mul_u32_u24 v9, {UPH}, v5
v_lshl_add_u32 v9, v7, 3, v9
s_lshl_b32 s44, s51, 7
s_add_u32 s44, s44, {U0+128}
v_add_u32 v244, s44, v9
s_lshl_b32 s44, s52, 7
s_add_u32 s44, s44, {U0+128}
v_add_u32 v9, s44, v9
s_lshl2_add_u32 s53, s5, s7
v_and_b32 v238, 1, v0
v_lshrrev_b32 v60, 1, v0
v_mul_u32_u24 v60, 2752, v60
v_lshl_add_u32 v60, v238, 4, v60
s_lshl_b32 s44, s6, 5
v_add_u32 v240, s44, v60
s_lshl_b32 s44, s6, 14
v_lshl_add_u32 v60, v13, 10, s44
v_lshl_add_u32 v241, v12, 4, v60
s_mul_i32 s44, s46, {4*2752}
s_mul_i32 s47, s42, 352
s_add_u32 s44, s44, s47
v_mul_u32_u24 v61, 2752, v13
v_lshlrev_b32 v62, 6, v12
v_min_u32 v62, 348, v62
v_add3_u32 v245, v61, v62, s44
v_min_u32 v245, {512*2752-4}, v245
s_mul_i32 s44, s46, 1408
s_mul_i32 s47, s42, {176*1024}
s_add_u32 s44, s44, s47
v_min_u32 v62, 21, v0
v_lshl_add_u32 v246, v62, 6, s44
v_min_u32 v246, {1376*1024-4}, v246
v_lshl_add_u32 v238, v238, 4, v{vM}
s_add_u32 s44, s40, 32768
s_addc_u32 s45, s41, 0
s_add_u32 s46, s40, 524288
s_addc_u32 s47, s41, 0
s_add_u32 s48, s40, 557056
s_addc_u32 s49, s41, 0
s_mov_b32 s57, 0x3f803f80""")
if OPT["iso"]:
    signal(C_U, vM, vOne)
    A("s_branch FIN")
A(f"{fs(10)}\ns_waitcnt vmcnt(1)")
stamp(1)
xs = [XA+i for i in range(4)] + [XB+i for i in range(4)]
for i in range(8):
    c = lambda r: "0" if i == 0 else f"v{r}"
    A(f"""v_dot2_f32_bf16 v40, v{xs[i]}, s57, {c(40)}
    v_dot2_f32_bf16 v41, v{xs[i]}, v{xs[i]}, {c(41)}
    v_dot2_f32_bf16 v42, v{xs[i]}, v{WR+i}, {c(42)}
    v_dot2_f32_bf16 v43, v{WR+i}, s57, {c(43)}""")
A(f"""v_mov_b32 v{XA+4}, v{XA+2}
v_mov_b32 v{XA+5}, v{XA+3}
v_permlane32_swap_b32 v40, v41
v_mov_b32 v{XB+4}, v{XB+2}
v_permlane32_swap_b32 v42, v43
v_add_f32 v40, v40, v41
v_add_f32 v42, v42, v43
v_mov_b32 v{XB+5}, v{XB+3}
v_permlane16_swap_b32 v40, v42
v_add_f32 v40, v40, v42
v_add_f32_dpp v40, v40, v40 row_ror:8 {D}
ds_write_b32 v8, v40""")
signal(C_ST, vM, vOne)
A(f"""{fs(11)}
s_waitcnt vmcnt(0)
{fs(12)}
v_add_u32 v11, 1, v11
v_mov_b32 v{XA+3}, v11
v_mov_b32 v{XA+7}, v11
v_mov_b32 v{XB+3}, v11
v_mov_b32 v{XB+7}, v11""")
spin(C_ST, 4, vM, vT, extra="\n".join(f"ds_read_b128 {vr(44+4*q,4)}, v14 offset:{16*q}" for q in range(4)))
for q in (0, 2, 1, 3):
    A(f"v_pk_add_f32 {vr(44+4*q,2)}, {vr(44+4*q,2)}, {vr(46+4*q,2)}")
A(f"""v_add_f32 v44, v44, v45
v_add_f32 v52, v52, v53
v_mul_f32 v44, 0x3b000000, v44
v_mul_f32 v52, 0x3b000000, v52
v_fma_f32 v52, -v44, v44, v52
v_max_f32 v52, 0, v52
v_cvt_pk_bf16_f32 v52, v52, v52
v_and_b32 v52, s56, v52
v_add_f32 v52, 0x3727c5ac, v52
v_cvt_pk_bf16_f32 v52, v52, v52
v_and_b32 v52, s56, v52
v_sqrt_f32 v52, v52
v_add_f32 v48, v48, v49
v_cvt_pk_bf16_f32 v{XA+2}, v44, v52
v_cvt_pk_bf16_f32 v{XA+6}, v44, v52
global_store_dwordx4 v15, {vr(XA,4)}, s[40:41] sc1
v_cvt_pk_bf16_f32 v{XB+2}, v44, v52
global_store_dwordx4 v15, {vr(XA+4,4)}, s[44:45] sc1
v_cvt_pk_bf16_f32 v{XB+6}, v44, v52
global_store_dwordx4 v15, {vr(XB,4)}, s[46:47] sc1
global_store_dwordx4 v15, {vr(XB+4,4)}, s[48:49] sc1""")
stamp(2)
KW = 2
A(f"""s_cmp_lg_u32 s7, {KW}
s_cbranch_scc1 NOKEYST
v_and_b32 v45, s56, v{XA+2}
v_lshlrev_b32 v46, 16, v{XA+2}
v_rcp_f32 v45, v45
v_add_f32 v56, v56, v57
v_fma_f32 v48, -v46, v56, v48
v_mul_f32 v48, v48, v45
v_cvt_pk_bf16_f32 v48, v48, v48
v_ashrrev_i32 v49, 31, v48
v_or_b32 v49, 0x80000000, v49
v_xor_b32 v48, v48, v49
v_lshlrev_b32 v49, 1, v6
v_or_b32 v49, 0x8000, v49
v_and_or_b32 v60, v48, s56, v49
v_max_u32_dpp v50, v60, v60 quad_perm:[1,0,3,2] {D}
v_max_u32_dpp v50, v50, v50 quad_perm:[2,3,0,1] {D}
v_max_u32_dpp v50, v50, v50 row_half_mirror {D}
v_cmp_ne_u32 vcc, v60, v50
v_cndmask_b32 v51, 0, v60, vcc
v_cndmask_b32 v53, 0, v{vOne}, vcc
v_max_u32_dpp v51, v51, v51 quad_perm:[1,0,3,2] {D}
v_max_u32_dpp v51, v51, v51 quad_perm:[2,3,0,1] {D}
v_max_u32_dpp v51, v51, v51 row_half_mirror {D}
s_lshl_b32 s43, s2, 5
s_add_u32 s43, s43, {KEYS}
v_cmp_ge_u32 vcc, v60, v51
v_or_b32 v60, v60, v53
v_mov_b32 v61, v{XA+2}
v_mov_b32 v62, v11
v_lshl_add_u32 v53, v53, 4, s43
s_and_b64 exec, vcc, 0xff
global_store_dwordx3 v53, v[60:62], s[40:41] sc1
s_mov_b64 exec, -1
NOKEYST:""")
def iopf():
    A("global_load_dword v247, v245, s[30:31]\nglobal_load_dword v248, v245, s[32:33]\nglobal_load_dword v249, v246, s[34:35]")
if OPT["wpf"] == 4: iopf()
GA, GB, KV = 64, 80, 96
A("s_cmp_eq_u32 s53, 7\ns_cbranch_scc1 SERV")
if OPT["touch"]: A("s_branch TIO\nRIO:")
A(f"s_waitcnt vmcnt({OPT['dw']})" if OPT["wpf"] == 4 else "s_waitcnt vmcnt(0)")
stamp(3)
if OPT["dly"]:
    A(f"""s_add_u32 s58, s64, {OPT["dly"]}
    DLY:
    s_memrealtime s[60:61]
    s_waitcnt lgkmcnt(0)
    s_sub_u32 s59, s58, s60
    s_cmp_gt_i32 s59, 0
    s_cbranch_scc1 DLY""")
A("s_mov_b32 s59, 0")
A.lab("SWL")
for k in range(4): A(f"global_load_dwordx4 {vr(GB+4*k,4)}, v235, s[40:41] offset:{128*k} sc1")
for k in range(4): A(f"global_load_dwordx4 {vr(GA+4*k,4)}, v236, s[40:41] offset:{128*k} sc1")
A(f"""s_add_u32 s59, s59, 1
s_waitcnt vmcnt(0)
v_min3_u32 v16, v{GA+3}, v{GA+7}, v{GA+11}
v_max3_u32 v17, v{GA+3}, v{GA+7}, v{GA+11}
v_min3_u32 v16, v16, v{GA+15}, v{GB+3}
v_max3_u32 v17, v17, v{GA+15}, v{GB+3}
v_min3_u32 v16, v16, v{GB+7}, v{GB+11}
v_max3_u32 v17, v17, v{GB+7}, v{GB+11}
v_min3_u32 v16, v16, v{GB+15}, v11
v_max3_u32 v17, v17, v{GB+15}, v11
s_cmp_gt_u32 s59, {TIMEOUT}
v_cmp_ne_u32 vcc, v16, v17
s_cbranch_scc1 SWD
s_and_b64 exec, exec, vcc
s_cbranch_execnz SWL
SWD:
s_mov_b64 exec, -1""")
stamp(4)
if STAMPS: A("s_mul_i32 s58, s59, 100\ns_add_u32 s78, s64, s58\ns_addc_u32 s79, s65, 0")
R_, N_, P_ = 16, 20, 56
XA_, XNA, XB_, XNB = 24, 40, 128, 144
def norm(G, va, X_, XN_):
    for k in range(4): A(f"v_and_b32 v{R_+k}, s56, v{G+4*k+2}")
    for k in range(4): A(f"v_rcp_f32 v{R_+k}, v{R_+k}\nv_lshlrev_b32 v{N_+k}, 16, v{G+4*k+2}")
    for k in range(4): A(f"v_lshlrev_b32 v{X_+k}, 16, v{G+4*k}")
    for h in range(2): A(f"v_pk_mul_f32 {vr(N_+2*h,2)}, {vr(N_+2*h,2)}, {vr(R_+2*h,2)} neg_lo:[1,0] neg_hi:[1,0]")
    for j in range(4):
        if j < 3:
            jj = j+1
            for k in range(4):
                if jj & 1: A(f"v_and_b32 v{X_+4*jj+k}, s56, v{G+4*k+(jj>>1)}")
                else: A(f"v_lshlrev_b32 v{X_+4*jj+k}, 16, v{G+4*k+(jj>>1)}")
        for h in range(2): A(f"v_pk_fma_f32 {vr(XN_+4*j+2*h,2)}, {vr(X_+4*j+2*h,2)}, {vr(R_+2*h,2)}, {vr(N_+2*h,2)}")
        for h in range(2): A(f"v_cvt_pk_bf16_f32 v{P_+2*j+h}, v{XN_+4*j+2*h}, v{XN_+4*j+2*h+1}")
        A(f"ds_write_b64 v{va}, {vr(P_+2*j,2)} offset:{j*UCH}")
norm(GB, 9, XB_, XNB)
norm(GA, 244, XA_, XNA)
signal(C_U, vM, vOne)
stamp(5)
A("""s_setprio 0
s_cmp_eq_u32 s53, 3
s_cbranch_scc1 KEYSR
s_branch AFTK""")

def service():
    A.lab("SERV")
    A(f"""s_cmp_gt_u32 s6, 85
    s_cbranch_scc1 SNOF
    s_mov_b32 s42, {W0}
    s_mov_b32 s43, {WD}""")
    if OPT["sw"]: A("s_waitcnt vmcnt(0)")
    stamp(13)
    if OPT["nodma"]: A("s_branch KEYSR")
    A.lab("SVL")
    for i in range(4):
        A(f"""s_mov_b32 m0, s42
        s_add_u32 s44, s42, 16384
        global_load_lds_dwordx4 v240, s[30:31]
        s_mov_b32 m0, s44
        s_add_u32 s42, s42, 1024
        global_load_lds_dwordx4 v240, s[32:33]
        v_add_u32 v240, {32*2752}, v240""")
    A(f"s_cmp_lt_u32 s42, {W0+16384}\ns_cbranch_scc1 SVL")
    A.lab("KEYSR")
    A(f"""v_lshlrev_b32 v18, 5, v0
    v_add_u32 v18, {KEYS+4096}, v18
    s_mov_b32 s48, 0
    KPOLL:""")
    for i in range(8):
        A(f"global_load_dwordx3 {vr(KV+4*i,3)}, v18, s[40:41] offset:{2048*(i>>1)-4096+16*(i&1)} sc1")
    A(f"""s_add_u32 s48, s48, s53
    s_cmp_lg_u32 s48, 7
    s_cbranch_scc1 KW0""")
    if not OPT["nodma"]:
        A("SVD:")
        for i in range(4):
            A(f"""s_mov_b32 m0, s43
            s_add_u32 s43, s43, {WDS}
            global_load_lds_dwordx4 v241, s[34:35]
            v_add_u32 v241, {4096 if i < 3 else 256-3*4096}, v241""")
        A(f"s_cmp_lt_u32 s43, {WD+16*WDS}\ns_cbranch_scc1 SVD")
    stamp(12)
    A(f"""v_lshrrev_b32 v14, 2, v12
    v_lshlrev_b32 v15, 8, v13
    v_lshl_add_u32 v15, v14, 5, v15
    v_lshl_add_u32 v15, v5, 3, v15
    v_add_u32 v15, {W0}, v15
    s_mov_b32 s57, {WDS}
    v_lshlrev_b32 v14, 8, v14
    v_mad_u32_u24 v14, v13, s57, v14
    v_lshl_add_u32 v14, v5, 3, v14
    v_add_u32 v14, {WD}, v14
    v_lshrrev_b32 v8, 1, v12
    v_lshl_add_u32 v8, v8, 2, v13
    v_lshlrev_b32 v8, 4, v8
    v_and_b32 v9, 1, v0
    v_lshl_add_u32 v9, v9, 11, v8
    s_lshl_b32 s42, s6, 12
    s_add_u32 s42, s42, {PART}
    v_add_u32 v9, s42, v9
    v_bfe_i32 v10, v0, 1, 1
    s_waitcnt vmcnt({0 if OPT["nodma"] else 16})
    s_branch KW1
    SNOF:
    s_mov_b32 s53, 5
    s_setprio 0""")
    spin(C_U, 3, vM, vT)
    A(f"""s_branch KEYSR
    KW0:
    s_waitcnt vmcnt(0)
    KW1:
    v_min3_u32 v16, v{KV+2}, v{KV+6}, v{KV+10}
    v_max3_u32 v17, v{KV+2}, v{KV+6}, v{KV+10}
    v_min3_u32 v16, v16, v{KV+14}, v{KV+18}
    v_max3_u32 v17, v17, v{KV+14}, v{KV+18}
    v_min3_u32 v16, v16, v{KV+22}, v{KV+26}
    v_max3_u32 v17, v17, v{KV+22}, v{KV+26}
    v_min3_u32 v16, v16, v{KV+30}, v11
    v_max3_u32 v17, v17, v{KV+30}, v11
    s_cmp_gt_u32 s48, {TIMEOUT*7}
    v_cmp_ne_u32 vcc, v16, v17
    s_cbranch_scc1 KDONE
    s_and_b64 exec, exec, vcc
    s_cbranch_execnz KPOLL
    KDONE:
    s_mov_b64 exec, -1""")
    def k1(p): return KV+8*p
    def k2(p): return KV+8*p+4
    for a, b in ((0,1),(2,3),(0,2)):
        A(f"""v_min_u32 v16, v{k1(a)}, v{k1(b)}
        v_max_u32 v{k1(a)}, v{k1(a)}, v{k1(b)}
        v_max3_u32 v{k2(a)}, v{k2(a)}, v{k2(b)}, v16""")
    m1, m2 = k1(0), k2(0)
    for pat in ("quad_perm:[1,0,3,2]", "quad_perm:[2,3,0,1]", "row_half_mirror", "row_mirror"):
        A(f"""v_min_u32_dpp v16, v{m1}, v{m1} {pat} {D}
        v_max_u32_dpp v{m1}, v{m1}, v{m1} {pat} {D}
        v_max_u32_dpp v{m2}, v{m2}, v{m2} {pat} {D}
        v_max_u32 v{m2}, v{m2}, v16""")
    A("s_mov_b32 vcc_lo, 0xaaaaaaaa\ns_mov_b32 vcc_hi, 0xaaaaaaaa")
    for i in range(4): A(f"v_readlane_b32 s{96+i}, v{m1}, {16*i}")
    for i in range(4): A(f"v_readlane_b32 s{60+i}, v{m2}, {16*i}")
    for a, b in ((0,1),(2,3),(0,2)):
        A(f"""s_min_u32 s48, s{96+a}, s{96+b}
        s_max_u32 s{96+a}, s{96+a}, s{96+b}
        s_max_u32 s{60+a}, s{60+a}, s{60+b}
        s_max_u32 s{60+a}, s{60+a}, s48""")
    A(f"""v_mov_b32 v16, s96
    s_or_b32 s60, s60, 0x8000
    v_mov_b32 v17, s60
    v_cndmask_b32 v16, v16, v17, vcc
    v_bfe_u32 v17, v16, 1, 11
    s_cmp_lg_u32 s53, 7
    s_cbranch_scc1 KNX
    v_lshl_add_u32 v8, v17, 10, v8
    global_load_dwordx4 v[24:27], v8, s[8:9]
    global_load_dwordx4 v[28:31], v8, s[8:9] offset:512
    KNX:
    v_bfe_u32 v19, v16, 6, 6
    v_bfe_u32 v18, v16, 3, 2
    v_lshl_or_b32 v18, v19, 2, v18
    v_and_b32 v19, 1, v16
    v_lshl_or_b32 v18, v18, 1, v19
    v_lshlrev_b32 v18, 4, v18
    v_add_u32 v18, {KEYS+4}, v18
    ds_write_b128 v238, v[16:19] offset:{SEL}""")
    stamp(15)
    A(f"""s_cbranch_scc0 FFN
    s_cmp_eq_u32 s53, 5
    s_cbranch_scc1 FINS
    s_cmp_lg_u32 s2, 0
    s_cbranch_scc1 AFTK
    v_mov_b32 v16, {EPOCH}
    global_store_dword v16, v11, s[40:41] sc1
    s_branch AFTK
    FFN:
    global_load_dword v32, v18, s[40:41] sc1""")
    FA, FD, RB, DG, BD, DD = 64, 192, 44, 56, 64, 80
    for c in range(16):
        for m in range(2):
            for h in range(2):
                A(f"ds_read_b64_tr_b16 {vr(FA+8*c+4*m+2*h,2)}, v15 offset:{m*16384+c*1024+128*h}")
    ffs(9)
    A("s_waitcnt vmcnt(3)")
    for c in range(4):
        for w in range(4):
            for t in range(2):
                A(f"ds_read_b64_tr_b16 {vr(FD+16*c+4*w+2*t,2)}, v14 offset:{w*4*WDS+64*c+32*t}")
    ffs(10)
    A("s_waitcnt vmcnt(0)")
    stamp(7)
    def nrm(N):
        o = []
        for i in range(4): o += [f"v_lshlrev_b32 v{34+2*i}, 16, v{N+i}", f"v_and_b32 v{35+2*i}, s56, v{N+i}"]
        for i in range(8): o.append(f"v_fma_f32 v{34+i}, v{34+i}, v33, v32")
        for i in range(4): o.append(f"v_cvt_pk_bf16_f32 v{N+i}, v{34+2*i}, v{35+2*i}")
        return o
    n0 = nrm(24)
    A(f"""v_and_b32 v33, s56, v32
    v_rcp_f32 v33, v33
    v_lshlrev_b32 v32, 16, v32""")
    for t in n0[:8]: A(t)
    A("v_mul_f32_e64 v32, -v32, v33")
    for t in n0[8:]: A(t)
    def breg(c): return (24 + 4*(c>>3)) if (c & 7) == 0 else RB + 4*(c % 3)
    def movs(c):
        if c > 15 or (c & 7) == 0: return []
        return [f"v_mov_b32_dpp v{breg(c)+i}, v{24+4*(c>>3)+i} row_shl:{2*(c&7)} {D} bound_ctrl:0" for i in range(4)]
    fill = nrm(28) + [f"v_mov_b32 v{BD+i}, 0" for i in range(16)]
    for t in movs(1): A(t)
    A("s_waitcnt lgkmcnt(0)")
    for c in range(16):
        q = movs(c+2)
        nf = 3 if c < 7 else 2
        if c == 6: nf = 20 - 3*6
        q += fill[:nf]; fill = fill[nf:]
        for m in range(2):
            A(f"v_mfma_f32_16x16x32_bf16 {vr(DG+4*m,4)}, {vr(FA+8*c+4*m,4)}, {vr(breg(c),4)}, " + ("0" if c == 0 else vr(DG+4*m,4)))
            h = (len(q)+1)//2
            for t in (q[:h] if m == 0 else q[h:]): A(t)
    assert not fill
    ffs(11)
    for i in range(4): A(f"s_mov_b32 s{96+i}, {hex(0x07060500+i)}")
    for i in range(1, 4):
        for m in range(2): A(f"v_mov_b32_dpp v{DG+4*m}, v{DG+4*m+i} row_shr:{2*i} {D}")
    FB = 34
    A(f"""v_cvt_pk_bf16_f32 v{FB}, v{DG}, v{DG+4}
    v_lshlrev_b32 v{FB+1}, 16, v{FB}
    v_mul_f32 v{FB+2}, {NLOG2E}, v{FB+1}
    v_exp_f32 v{FB+2}, v{FB+2}
    v_and_b32 v{FB}, s56, v{FB}
    v_add_f32 v{FB+2}, 1.0, v{FB+2}
    v_rcp_f32 v{FB+2}, v{FB+2}
    v_mul_f32 v{FB+1}, v{FB+1}, v{FB+2}
    v_cvt_pk_bf16_f32 v{FB+1}, v{FB+1}, v{FB+1}
    v_and_b32 v{FB+1}, s56, v{FB+1}
    v_mul_f32 v{FB}, v{FB}, v{FB+1}
    v_mov_b32_dpp v{FB+1}, v{FB} quad_perm:[0,1,0,1] {D}
    v_mov_b32_dpp v{FB+2}, v{FB} quad_perm:[2,3,2,3] {D}
    v_cvt_pk_bf16_f32 v{FB}, v{FB+1}, v{FB+2}
    v_and_b32 v{FB+1}, v10, v{FB}
    v_bfi_b32 v{FB}, v10, 0, v{FB}""")
    ffs(13)
    def dm(c):
        if c > 3: return []
        o = []
        for t in (1, 0):
            for i1 in range(2):
                d = c - i1
                pat = "quad_perm:[0,1,2,3]" if d == 0 else (f"row_shr:{4*d}" if d > 0 else "row_shl:4")
                o.append(f"v_mov_b32_dpp v{BD+4*c+2*t+i1}, v{FB+t} {pat} row_mask:0xf bank_mask:{hex(1<<c)}")
        return o
    for t in dm(0) + dm(1)[:2]: A(t)
    rest = dm(1)[2:] + dm(2) + dm(3)
    for c in range(4):
        for w in range(4):
            A(f"v_mfma_f32_16x16x32_bf16 {vr(DD+4*w,4)}, {vr(FD+16*c+4*w,4)}, {vr(BD+4*c,4)}, " + ("0" if c == 0 else vr(DD+4*w,4)))
            for t in rest[:2]: A(t)
            rest = rest[2:]
    ffs(14)
    for w in range(4):
        for i in range(4): A(f"v_perm_b32 v{DD+4*w+i}, v{DD+4*w+i}, v11, s{96+i}")
        A(f"global_store_dwordx4 v9, {vr(DD+4*w,4)}, s[40:41] offset:{512*w} sc1")
    A("s_setprio 0")
    stamp(8)
    A("s_branch FINS")

A(".p2align 12")
if OPT["touch"]: A("TIO:\ns_branch RIO")
A.lab("AFTK")
GG, CC, YY, GG2, CC2 = 64, 80, 96, 160, 176
def precompute(X_, XN_, GG, CC):
    for j in range(4):
        for k in range(4): A(f"v_mul_f32 v{16+k}, {NLOG2E}, v{XN_+4*j+k}")
        for k in range(4): A(f"v_exp_f32 v{16+k}, v{16+k}")
        for k in range(4): A(f"v_mul_f32 v{20+k}, s{44+j}, v{XN_+4*j+k}")
        for k in range(4): A(f"v_add_f32 v{16+k}, 1.0, v{16+k}")
        for k in range(4): A(f"v_rcp_f32 v{16+k}, v{16+k}")
        for k in range(4): A(f"v_mul_f32 v{GG+4*k+j}, v{16+k}, v{XN_+4*j+k}")
        for k in range(4): A(f"v_fma_f32 v{CC+4*k+j}, v{20+k}, v{GG+4*k+j}, v{X_+4*j+k}")
A("""s_lshl_b32 s44, s54, 16
s_and_b32 s45, s54, s56
s_lshl_b32 s46, s55, 16
s_and_b32 s47, s55, s56""")
precompute(XA_, XNA, GG, CC)
A("s_cmp_lg_u32 s53, 6\ns_cbranch_scc1 NOP2")
precompute(XB_, XNB, GG2, CC2)
A.lab("NOP2")
A(f"""s_lshl_b32 s42, s51, 8
v_add_u32 v8, s42, v4
v_mul_u32_u24 v10, 272, v7
v_lshl_add_u32 v10, v5, 4, v10
s_mul_i32 s42, s7, {YBLK}
s_add_u32 s42, s42, {Y0}
v_add_u32 v10, s42, v10
s_lshl_b32 s42, s7, 2
v_add_u32 v14, s42, v{vM}""")
stamp(9)
spin(SEL+16, 0, vM, vT, extra=f"ds_read_b32 v21, v238 offset:{SEL+4}", nonzero=True)
stamp(6)
A("v_readlane_b32 s62, v21, 0\nv_readlane_b32 s63, v21, 1")
def masks(add, sb):
    for k in range(4):
        A(f"""v_add_u32 v9, {add+4*k}, v8
        v_cmp_ne_u32 vcc, s62, v9
        v_cmp_ne_u32 {sr(96)}, s63, v9
        s_and_b64 {sr(sb+2*k)}, vcc, {sr(96)}""")
def epi(blk, GG, CC, sb):
    spin(C_Y+4*blk, 4, 14, vT, extra="\n".join(f"ds_read_b128 {vr(YY+4*k,4)}, v10 offset:{64*k+blk*YBLK}" for k in range(4)))
    stamp(10)
    for k in range(4):
        if OPT["epk"]:
            for h in range(2): A(f"v_pk_fma_f32 {vr(YY+4*k+2*h,2)}, {vr(YY+4*k+2*h,2)}, {vr(GG+4*k+2*h,2)}, {vr(CC+4*k+2*h,2)}")
        else:
            for h in range(4): A(f"v_fma_f32 v{YY+4*k+h}, v{YY+4*k+h}, v{GG+4*k+h}, v{CC+4*k+h}")
        for h in range(2): A(f"v_cvt_pk_bf16_f32 v{YY+4*k+h}, v{YY+4*k+2*h}, v{YY+4*k+2*h+1}")
        A(f"s_mov_b64 exec, {sr(sb+2*k)}")
        A(f"global_store_dwordx2 v{239 if k>>1 else 243}, {vr(YY+4*k,2)}, s[36:37] offset:{-4096 if (k&1)==0 else 0}")
        A("s_mov_b64 exec, -1")
    stamp(11)
masks(0, 44)
A("s_cmp_lg_u32 s53, 6\ns_cbranch_scc1 EPI")
masks(256, 10)
A.lab("EPI")
epi(0, GG, CC, 44)
A("""s_cmp_eq_u32 s53, 0
s_cbranch_scc1 FINS
s_cmp_lg_u32 s53, 6
s_cbranch_scc1 FIN
s_add_u32 s36, s36, 0x40000
s_addc_u32 s37, s37, 0""")
YY = 112
epi(1, GG2, CC2, 10)
A("s_branch FIN")
A(f"""FINS:
v_lshrrev_b32 v16, 5, v0
v_lshl_add_u32 v17, v16, 4, v{vM}
ds_read_b128 v[20:23], v17 offset:{SEL}
v_bfe_u32 v13, v0, 3, 2
s_lshl_b32 s45, s4, 3
v_lshl_add_u32 v18, v13, 1, s45
v_and_b32 v19, 31, v0
s_lshl_b32 s44, s4, 4
s_add_u32 s44, s44, {PART}
v_lshl_add_u32 v16, v16, 11, s44
v_lshl_add_u32 v117, v19, 12, v16
v_add_u32 v118, {32*4096}, v117
v_min_u32 v19, 21, v19
v_lshl_add_u32 v119, v19, 12, v16
v_add_u32 v119, {64*4096}, v119
s_waitcnt lgkmcnt(0)
v_lshrrev_b32 v16, 8, v21
v_add_u32 v17, 6, v16
v_bfe_u32 v17, v17, 2, 1
v_cmp_ne_u32 s[100:101], s5, v17
v_lshl_add_u32 v116, v21, 10, v18
s_cmp_eq_u64 s[100:101], 0
s_cbranch_scc1 FIN
global_load_ushort v112, v116, s[8:9]
global_load_dword v113, v22, s[40:41] sc1
global_load_ushort v114, v18, s[24:25]
s_lshl_b32 s44, s5, 1
v_add_u32 v16, s44, v16
v_and_b32 v16, 3, v16
v_lshl_add_u32 v121, v16, 2, v{vM}
v_mul_u32_u24 v16, {YBLK}, v16
v_bfe_u32 v17, v21, 4, 4
v_mul_u32_u24 v17, 272, v17
v_and_b32 v19, 15, v21
v_lshl_add_u32 v17, v19, 4, v17
v_lshl_add_u32 v17, v13, 2, v17
s_mov_b32 s44, {Y0}
v_add3_u32 v120, v16, v17, s44
v_ashrrev_i32 v16, 31, v20
v_not_b32 v16, v16
v_or_b32 v16, 0x80000000, v16
v_xor_b32 v16, v16, v20
v_and_b32 v16, s56, v16
v_mul_f32 v115, {NLOG2E}, v16
v_exp_f32 v115, v115
s_mov_b32 s54, 0x0c0c0400
s_mov_b32 s55, 0x04000c0c
v_add_f32 v115, 1.0, v115
v_rcp_f32 v115, v115
s_mov_b32 s52, 0
s_waitcnt vmcnt(0)
v_cvt_pk_bf16_f32 v115, v115, v115
v_and_b32 v115, s56, v115
v_lshlrev_b32 v112, 16, v112
v_lshlrev_b32 v114, 16, v114
v_and_b32 v20, s56, v113
v_lshlrev_b32 v113, 16, v113
v_rcp_f32 v20, v20
v_sub_f32 v113, v112, v113
v_cvt_pk_bf16_f32 v113, v113, v113
v_and_b32 v113, s56, v113
v_mul_f32 v113, v113, v20
v_cvt_pk_bf16_f32 v113, v113, v113
v_and_b32 v113, s56, v113
v_mul_f32 v114, v114, v113
v_cvt_pk_bf16_f32 v114, v114, v114
v_and_b32 v114, s56, v114""")
spin(C_Y+4*OPT["pg"], 4, vM, vT)
stamp(3 if not OPT["ffs"] else 12)
A(f"""s_mov_b64 exec, s[100:101]
PPOLL:
global_load_dwordx4 v[24:27], v117, s[40:41] sc1
global_load_dwordx4 v[28:31], v118, s[40:41] sc1
global_load_dwordx4 v[32:35], v119, s[40:41] sc1
s_add_u32 s52, s52, 1
s_waitcnt vmcnt(0)
v_perm_b32 v16, v25, v24, s54
v_perm_b32 v17, v27, v26, s55
v_perm_b32 v18, v29, v28, s54
v_perm_b32 v19, v31, v30, s55
v_perm_b32 v20, v33, v32, s54
v_perm_b32 v21, v35, v34, s55
v_or_b32 v16, v16, v17
v_or_b32 v18, v18, v19
v_or_b32 v20, v20, v21
v_min3_u32 v17, v16, v18, v20
v_max3_u32 v19, v16, v18, v20
v_min_u32 v17, v17, v11
v_max_u32 v19, v19, v11
s_cmp_gt_u32 s52, {TIMEOUT}
v_cmp_ne_u32 vcc, v17, v19
s_cbranch_scc1 PDONE
s_and_b64 exec, exec, vcc
s_cbranch_execnz PPOLL
PDONE:""")
stamp(12)
A(f"""s_mov_b32 exec_lo, 0x3fffff
s_mov_b32 exec_hi, 0x3fffff
v_add_f32 v24, v24, v32
v_add_f32 v26, v26, v34
v_add_f32 v25, v25, v33
v_add_f32 v27, v27, v35
s_mov_b64 exec, -1
v_add_f32 v24, v24, v28
v_add_f32 v26, v26, v30
v_add_f32 v25, v25, v29
v_add_f32 v27, v27, v31
v_permlane16_swap_b32 v24, v26
v_permlane16_swap_b32 v25, v27
v_add_f32 v24, v24, v26
v_add_f32 v25, v25, v27
v_add_f32_dpp v24, v24, v24 row_ror:8 row_mask:0xf bank_mask:0x3
v_add_f32_dpp v24, v25, v25 row_ror:8 row_mask:0xf bank_mask:0xc
v_add_f32_dpp v24, v24, v24 row_half_mirror {D}
v_add_f32_dpp v24, v24, v24 quad_perm:[1,0,3,2] {D}
v_add_f32_dpp v24, v24, v24 quad_perm:[2,3,0,1] {D}
v_cvt_pk_bf16_f32 v24, v24, v24
v_and_b32 v24, s56, v24
v_mul_f32 v24, v24, v115
v_cvt_pk_bf16_f32 v24, v24, v24
v_and_b32 v24, s56, v24
v_add_f32 v24, v24, v113
v_cvt_pk_bf16_f32 v24, v24, v24
v_and_b32 v24, s56, v24
v_mul_f32 v25, {NLOG2E}, v24
v_exp_f32 v25, v25
s_mov_b32 s44, 0x01010101
s_mov_b32 s45, 0x01010101
v_add_f32 v25, 1.0, v25
v_rcp_f32 v25, v25
s_mov_b32 s59, 0
s_and_b64 exec, s[44:45], s[100:101]
v_mul_f32 v24, v24, v25
v_cvt_pk_bf16_f32 v24, v24, v24
v_and_b32 v24, s56, v24
FSP:
ds_read_b32 v{vT}, v121 offset:{C_Y}
ds_read_b32 v26, v120
s_add_u32 s59, s59, 1
s_cmp_gt_u32 s59, {TIMEOUT*16}
s_waitcnt lgkmcnt(0)
v_cmp_gt_u32 vcc, 4, v{vT}
s_cbranch_scc1 FSD
s_cbranch_vccnz FSP
FSD:
v_cvt_pk_bf16_f32 v26, v26, v26
v_and_b32 v26, s56, v26
v_add_f32 v26, v26, v114
v_cvt_pk_bf16_f32 v26, v26, v26
v_and_b32 v26, s56, v26
v_mul_f32 v26, v26, v24
v_cvt_pk_bf16_f32 v26, v26, v26
v_and_b32 v26, s56, v26
v_add_f32 v26, v26, v112
v_cvt_pk_bf16_f32 v26, v26, v26
global_store_short v116, v26, s[36:37]""")
stamp(4)
A.lab("FIN")
if STAMPS:
    A("s_waitcnt vmcnt(0)")
    stamp(14)
    A("s_branch IOFL")
else: A("s_endpgm")

A(".p2align 12")
A(f"""KG0:
{fs(9)}
s_waitcnt lgkmcnt(0)
s_lshl_b32 s45, s44, 16
s_and_b32 s44, s44, s56
s_bitcmp1_b32 s42, 0
s_cselect_b32 s44, s44, s45
v_mov_b32 v8, {LOG2E}
v_mul_f32 v8, s44, v8
v_exp_f32 v8, v8
s_mov_b32 s52, 0x01000c0c
s_mov_b32 s53, 0
v_cvt_pk_bf16_f32 v8, v8, v8
v_and_b32 v8, s56, v8
v_mul_f32 v10, {LOG2E}, v8
v_mul_f32 v11, {INV2PI}, v8""")
for i in range(12): A(f"v_mov_b32 v{DT+i}, 0")
if OPT["touch"]: A("s_cmp_eq_u32 s5, 1\ns_cbranch_scc1 TC1\ns_branch TC0\nRC:")
A(fs(10))
A("s_waitcnt vmcnt(0)")
stamp(1)
A.lab("KLOOP")
Z = 80
Z8, Z128 = 96, 98
T = 100
for i in range(6): A(f"v_perm_b32 v{T+i}, v{RAW+i}, v{RAW+i}, s52")
A(f"""v_mul_f32 v{T}, v{T}, v10
v_mul_f32 v{T+1}, v{T+1}, v11
v_pk_mul_f32 {vr(T+6,2)}, {vr(T+4,2)}, {vr(T+2,2)} op_sel:[0,0] op_sel_hi:[0,1] neg_hi:[0,1]
v_mul_f32 v{T+8}, 0x41000000, v{T}
v_mul_f32 v{T+9}, 0x41000000, v{T+1}
v_mul_f32 v{T+10}, 0x43000000, v{T}
v_mul_f32 v{T+11}, 0x43000000, v{T+1}
v_pk_fma_f32 {vr(T+6,2)}, {vr(T+4,2)}, {vr(T+2,2)}, {vr(T+6,2)} op_sel:[1,1,0] op_sel_hi:[1,0,1] neg_lo:[0,1,0] neg_hi:[0,1,0]
v_fract_f32 v{T+1}, v{T+1}
v_fract_f32 v{T+9}, v{T+9}
v_fract_f32 v{T+11}, v{T+11}
v_exp_f32 v{T}, v{T}
v_exp_f32 v{T+8}, v{T+8}
v_exp_f32 v{T+10}, v{T+10}
v_cos_f32 v{Z+2}, v{T+1}
v_sin_f32 v{Z+3}, v{T+1}
v_cos_f32 v{Z8}, v{T+9}
v_sin_f32 v{Z8+1}, v{T+9}
v_cos_f32 v{Z128}, v{T+11}
v_sin_f32 v{Z128+1}, v{T+11}
v_pk_mul_f32 {vr(T+6,2)}, {vr(T+6,2)}, v[8:9] op_sel_hi:[1,0]
v_pk_mul_f32 {vr(Z+2,2)}, {vr(Z+2,2)}, {vr(T,2)} op_sel_hi:[1,0]
v_pk_mul_f32 {vr(Z8,2)}, {vr(Z8,2)}, {vr(T+8,2)} op_sel_hi:[1,0] neg_hi:[1,0]
v_pk_mul_f32 {vr(Z128,2)}, {vr(Z128,2)}, {vr(T+10,2)} op_sel_hi:[1,0]""")
def cm(o, w, z): return [f"v_pk_mul_f32 {vr(o,2)}, {vr(w,2)}, {vr(z,2)} op_sel:[0,0] op_sel_hi:[0,1]",
                         f"v_pk_fma_f32 {vr(o,2)}, {vr(w,2)}, {vr(z,2)}, {vr(o,2)} op_sel:[1,1,0] op_sel_hi:[1,0,1] neg_lo:[0,1,0]"]
cv = [0]
def emit_row(src, row):
    r = 140 + (cv[0] % 4); cv[0] += 1
    return [f"v_cvt_pk_bf16_f32 v{r}, v{src}, v{src+1}", f"ds_write_addtid_b32 v{r} offset:{272*row}"]
sB = emit_row(T+6, 41)
bb = [T+6, T+12]
for j in range(1, 16):
    sB += cm(bb[j&1], bb[(j-1)&1], Z8) + emit_row(bb[j&1], 41+j)
PP = 114
def preg(a): return Z128 if a == 1 else (PP+2*(a-2) if a <= 7 else 126+2*(a&1))
def prow(a): return {1:8, 2:16, 3:20, 4:24, 5:26, 6:28, 7:30}.get(a, 32+a-8)
sP = emit_row(Z128, 8)
for a in range(2, 17):
    sP += cm(preg(a), preg(a-1), Z128) + emit_row(preg(a), prow(a))
sZ = emit_row(Z+2, 1)
for b, (p, q) in {2:(1,1), 3:(2,1), 4:(2,2), 5:(4,1), 6:(4,2), 7:(4,3)}.items():
    sZ += cm(Z+2*b, Z+2*p, Z+2*q) + emit_row(Z+2*b, b)
tq = [130, 132, 134, 136]; ti = 0
prods = [(1,b,8+b) for b in range(1,8)] + [(2,2*b,16+b) for b in (1,2,3)] + [(3,2*b,20+b) for b in (1,2,3)] + [(a,4,prow(a)+1) for a in (4,5,6,7)]
sQ = []
for a, b, row in prods:
    o = tq[(ti % 2) + (2 if ti >= 8 else 0)]; ti += 1
    sQ.append(cm(o, preg(a), Z+2*b) + emit_row(o, row))
sZ += sum(sQ[:8], [])
sR = sum(sQ[8:], [])
def retemp(stream, base):
    out = []; n = 0; cur = None
    for t in stream:
        if t.startswith("v_cvt_pk"):
            cur = base + (n & 1); n += 1
            p = t.split(); t = f"{p[0]} v{cur}, {p[2]} {p[3]}"
        elif t.startswith("ds_write_addtid"):
            p = t.split(); t = f"{p[0]} v{cur} {p[2]}"
        out.append(t)
    return out
sB = retemp(sB, 138); sP = retemp(sP, 140); sZ = retemp(sZ, 142); sR = retemp(sR, 144)
streams = [sB, sP, sZ]; pos = [0,0,0,0]; rnd = 0
while True:
    if rnd == 30: streams.append(sR)
    any_ = False
    for i, s in enumerate(streams):
        if pos[i] < len(s): A(s[pos[i]]); pos[i] += 1; any_ = True
    rnd += 1
    if not any_ and rnd > 30: break
for c in range(4):
    for t, row in ((3, 41), (0, 0), (1, 16), (2, 32)):
        A(f"ds_read_b128 {vr(AF+16*c+4*t,4)}, v9 offset:{272*row+64*c}")
A("s_mov_b32 s52, 0x03020c0c\ns_add_u32 s53, s53, 1")
for c in range(4):
    A(f"s_waitcnt lgkmcnt({12-4*c})")
    for t in range(3):
        A(f"v_mfma_f32_16x16x32_bf16 {vr(DT+4*t,4)}, {vr(AF+16*c+4*t,4)}, {vr(AF+16*c+12,4)}, {vr(DT+4*t,4)}")
A("s_cmp_lt_u32 s53, 2\ns_cbranch_scc1 KLOOP")
stamp(2)
D0, D1, D2 = DT, DT+4, DT+8
A(f"""v_lshl_add_u32 v8, v12, 4, s50
v_lshl_add_u32 v10, v13, 10, v8
v_lshl_add_u32 v11, v13, 9, v8
v_lshl_add_u32 v14, v13, 8, v8
v_lshrrev_b32 v15, 1, v13
v_lshl_add_u32 v15, v15, 8, v8
v_and_b32 v9, 1, v13
v_lshl_add_u32 v15, v9, 3, v15
v_lshl_add_u32 v9, v0, 3, s50""")
E = 100
for i in range(4):
    A(f"v_mov_b32_dpp v{E+16+i}, v{D2+i} quad_perm:[0,0,2,2] row_mask:0xf bank_mask:0xf")
for i in range(4):
    A(f"v_cvt_pk_bf16_f32 v{E+4*i}, v{E+16+i}, v{D2+i}")
    for q in range(1, 4): A(f"v_cvt_pk_bf16_f32 v{E+4*i+q}, v{D2+i}, v{D2+i}")
A("s_mov_b32 exec_hi, 1")
for i in range(4):
    A(f"ds_write_b128 v10, {vr(E+4*i,4)} offset:{KXO+2*(1024+128*i-4)}")
    if i == 0: A("s_mov_b32 exec_hi, 0")
A("s_mov_b64 exec, -1")
E2 = 120
for h in range(2):
    a, b = D1+2*h, D1+2*h+1
    A(f"""v_cvt_pk_bf16_f32 v{E2+4*h}, v{a}, v{a}
    v_cvt_pk_bf16_f32 v{E2+4*h+1}, v{a}, v{a}
    v_cvt_pk_bf16_f32 v{E2+4*h+2}, v{a}, v{b}
    v_cvt_pk_bf16_f32 v{E2+4*h+3}, v{b}, v{b}""")
A(f"""v_cvt_pk_bf16_f32 v{E2+8}, v{D1}, v{D1}
v_cvt_pk_bf16_f32 v{E2+9}, v{D1}, v{D1+1}
v_cvt_pk_bf16_f32 v{E2+10}, v{D1+2}, v{D1+2}
v_cvt_pk_bf16_f32 v{E2+11}, v{D1+2}, v{D1+3}
v_cvt_pk_bf16_f32 v{E2+12}, v{D0}, v{D0+1}
v_cvt_pk_bf16_f32 v{E2+13}, v{D0+2}, v{D0+3}
s_mov_b32 exec_lo, 0
ds_write_b128 v11, {vr(E2,4)} offset:{KXO-4}
ds_write_b128 v11, {vr(E2+4,4)} offset:{KXO-4+256}
s_mov_b32 exec_lo, -1
s_mov_b32 exec_hi, 0
ds_write_b128 v14, {vr(E2+8,4)} offset:{KXO+2*(256-1)}
s_mov_b64 exec, 31
ds_write_b64 v9, v[4:5]
s_mov_b64 exec, -1
ds_write_b64 v15, {vr(E2+12,2)} offset:{KXO}""")
A(f"""v_and_b32 v8, 3, v0
v_lshrrev_b32 v9, 2, v12
v_sub_u32 v9, v8, v9
v_lshlrev_b32 v9, 3, v9
v_lshlrev_b32 v10, 6, v13
v_sub_u32 v9, v9, v10
s_add_u32 s42, s50, {KXO+192}
v_add_u32 v9, s42, v9""")
for q in range(16):
    for h in range(2):
        A(f"ds_read_b64_tr_b16 {vr(AF+4*q+2*h,2)}, v9 offset:{256*q+32-32*h}")
A(f"""v_lshlrev_b32 v10, 3, v12
v_lshl_add_u32 v10, v13, 4, v10
s_add_u32 s42, s51, 8
v_add_u32 v10, s42, v10
v_mul_u32_u24 v11, {UPH}, v8
v_lshl_add_u32 v11, v13, 4, v11
s_add_u32 s42, s51, 128
v_add_u32 v11, s42, v11
v_mul_u32_u24 v14, 272, v12
v_lshl_add_u32 v14, v13, 6, v14
s_lshl_b32 s42, s7, 2
s_add_u32 s42, s42, {Y0}
v_add_u32 v14, s42, v14
v_cmp_gt_u32 vcc, 16, v0
v_add_u32 v15, 47, v0
v_subrev_u32 v9, 16, v0
v_cndmask_b32 v15, v9, v15, vcc
v_writelane_b32 v15, -1, 0
s_add_u32 s42, s50, {CAR}
v_lshl_add_u32 v15, v15, 4, s42
v_lshl_add_u32 v8, v0, 4, s42
v_lshl_add_u32 v9, v0, 2, s42
v_subrev_u32 v9, 256, v9
s_mov_b64 exec, 1
ds_write_b128 v15, v[4:7]
s_mov_b64 exec, -1""")
stamp(3)
A("s_sub_u32 s57, 4, s5")
spin(C_U, "s57", vM, vT)
stamp(4)
A("s_setprio 1\ns_cmp_eq_u32 s5, 1\ns_cbranch_scc1 CONV1\ns_branch CONV0")

def conv(blocks, coff, nbx, xloc, xpos):
    items = []
    emax = 2*max(blocks)
    for e in range(-1, emax+1):
        for rho in range(4):
            ms = [(ACC+16*i+4*rho, 2*nb-e, e == -1) for i, nb in reversed(list(enumerate(blocks))) if e <= 2*nb]
            done = [i for i, nb in enumerate(blocks) if e == 2*nb and rho == 3]
            items.append(dict(kind="b", off=rho*UPH+64*(e+1), ms=ms, done=done))
    xi = [dict(kind="x", off=64*t, ms=[(XT, 2*nbx-1-t, t == 0)], done=(["x"] if t == 2*nbx-1 else [])) for t in range(2*nbx)]
    out = items[:xpos]; rest = items[xpos:]
    while xi or rest:
        if xi: out.append(xi.pop(0))
        if rest: out.append(rest.pop(0))
    items = out
    fifo = []
    def ds(text, tag=None):
        A(text); fifo.append(tag)
    def loads(n):
        it = items[n]; b = BB + 4*(n % 8)
        if it["kind"] == "b":
            return [(f"ds_read_b64 {vr(b,2)}, v10 offset:{it['off']}", n), (f"ds_read_b64 {vr(b+2,2)}, v10 offset:{it['off']+8}", n)]
        return [(f"ds_read_b128 {vr(b,4)}, v11 offset:{it['off']}", n)]
    def finish(i):
        if i == "x":
            return [f"v_add_f32_dpp v{XT+3}, v{XT+2}, v{XT+3} row_shl:1 row_mask:0xf bank_mask:0xf bound_ctrl:0",
                    f"v_add_f32_dpp v{XT+3}, v{XT+1}, v{XT+3} row_shl:2 row_mask:0xf bank_mask:0xf bound_ctrl:0",
                    f"s_mov_b32 exec_lo, 0|s_mov_b32 exec_hi, 0xe0000000|ds_write_b32 v9, v{XT+3} offset:{coff[xloc]}|s_mov_b64 exec, -1"]
        d = [ACC+16*i+4*r for r in range(4)]
        o = i*YBLK; t = 184
        return [f"v_add_f32 v{d[3]+1}, v{d[3]+1}, v{d[2]+2}",
                f"v_add_f32 v{d[3]+2}, v{d[3]+2}, v{d[2]+3}",
                f"v_add_f32 v{d[3]+1}, v{d[3]+1}, v{d[1]+3}",
                f"v_add_f32 v{d[0]+3}, v{d[0]+3}, v{d[1]+2}",
                f"ds_write_b128 v8, {vr(d[3],4)} offset:{coff[i]}",
                f"ds_read_b128 {vr(t,4)}, v15 offset:{coff[i]}@c{i}",
                f"v_add_f32 v{d[0]+1}, v{d[0]+1}, v{d[1]}",
                f"v_add_f32 v{d[0]+3}, v{d[0]+3}, v{d[2]+1}",
                f"v_add_f32 v{d[0]+2}, v{d[0]+2}, v{d[1]+1}",
                f"v_add_f32 v{d[0]+3}, v{d[0]+3}, v{d[3]}",
                f"v_add_f32 v{d[0]+2}, v{d[0]+2}, v{d[2]}",
                f"ds_write_b32 v14, v{d[0]+3} offset:{o+48}",
                "", "", "", "", "", "",
                f"#c{i}|v_add_f32 v{d[0]}, v{d[0]}, v{t+1}",
                f"v_add_f32 v{d[0]+1}, v{d[0]+1}, v{t+2}",
                f"v_add_f32 v{d[0]+2}, v{d[0]+2}, v{t+3}",
                f"ds_write_b32 v14, v{d[0]} offset:{o}",
                f"ds_write_b32 v14, v{d[0]+1} offset:{o+16}",
                f"ds_write_b32 v14, v{d[0]+2} offset:{o+32}",
                f"s_mov_b64 exec, 1|ds_add_u32 v{vM}, v{vOne} offset:{C_Y+4*i}|s_mov_b64 exec, -1"]
    def wait(tag):
        ks = [k for k, t in enumerate(fifo) if t == tag]
        if not ks: return
        A(f"s_waitcnt lgkmcnt({min(len(fifo)-1-ks[-1],15)})")
        del fifo[:ks[-1]+1]
    DEPTH = 6
    lq = []; nl = 0; fq = []
    def emit_f(t):
        for p in t.split("|"):
            if p == "": continue
            if p.startswith("#"): wait(p[1:])
            elif p.startswith("ds_"): ds(*p.split("@"))
            else: A(p)
    for n in range(min(DEPTH, len(items))):
        for t, tag in loads(n): ds(t, tag)
    nl = min(DEPTH, len(items)); mc = 0
    for n, it in enumerate(items):
        while lq and lq[0][1] <= n: ds(*lq.pop(0))
        wait(n)
        if nl < len(items) and nl <= n + DEPTH: lq += loads(nl); nl += 1
        b = BB + 4*(n % 8)
        for acc, q, first in it["ms"]:
            A(f"v_mfma_f32_16x16x32_bf16 {vr(acc,4)}, {vr(AF+4*q,4)}, {vr(b,4)}, " + ("0" if first else vr(acc,4)))
            mc += 1
            for _ in range(2):
                if lq: ds(*lq.pop(0))
                elif fq and fq[0][0] <= mc: emit_f(fq.pop(0)[1])
        for i in it["done"]:
            fq += [(mc+3, t) for t in finish(i)]
    for _, t in fq: emit_f(t)
A(".p2align 12")
if OPT["touch"]: A("TC0:\ns_branch RC")
A.lab("CONV0")
conv([0,1,6,7], [0, 1024, 2064, 3088], 6, 2, 16)
stamp(5)
A("s_branch KFL" if STAMPS else "s_endpgm")
A(".p2align 12")
if OPT["touch"]: A("TC1:\ns_branch RC")
A.lab("CONV1")
conv([2,3,4,5], [0, 1024, 2048, 3072], 2, 0, 2)
stamp(5)
A("s_branch KFL" if STAMPS else "s_endpgm")
A(".p2align 12")
service()
if STAMPS:
    A("KFL:")
    stamp_flush(2)
    A("s_endpgm\nIOFL:")
    stamp_flush(1)
A.lab("END")
A("s_endpgm")

n = A.fix(verbose=bool(OPT.get("v", 0)))
hdr = open("recurrent_scan__ssm_conv_s4__moe_arch_mod__prompt.s.ref").read().split("; Override launch")[0]
out = hdr + f"""; @launch grid=(256,1,1) block=(512,1,1) lds={LDS_TOTAL}
.amdgcn_target "amdgcn-amd-amdhsa--gfx950"
.text
.globl {NAME}
.p2align 12
.type {NAME},@function
{NAME}:
""" + A.text() + f""".section .rodata,"a"
.p2align 6
.amdhsa_kernel {NAME}
  .amdhsa_next_free_vgpr 256
  .amdhsa_next_free_sgpr 102
  .amdhsa_accum_offset 256
  .amdhsa_group_segment_fixed_size 0
  .amdhsa_kernarg_size 136
  .amdhsa_user_sgpr_count 2
  .amdhsa_user_sgpr_kernarg_segment_ptr 1
  .amdhsa_system_sgpr_workgroup_id_x 1
.end_amdhsa_kernel
"""
open(sys.argv[1], "w").write(out)
print("nops inserted", n, "lines", len(A.L), "lds", LDS_TOTAL)
```

```python
import sys, os
sys.path.insert(0, os.path.dirname(__file__))
from asmlib import Asm
NAME = "recurrent_scan__ssm_conv_s4__moe_arch_mod__prompt_kernel"
OPT = dict(stamps=0, dbg=0, cpf=1, iso=0, wpf=4, sw=1, nodma=0, dly=0, ffs=0, epk=0, pg=0, dw=3, touch=1, amp=0, ampi=0, ampj=0, wsb=0, fine=0, st2=0)
for a in sys.argv[2:]:
    k, v = a.split("="); OPT[k] = int(v, 0)
STAMPS = OPT["stamps"]

KEYS = 0x480000; EPOCH = 0x408000; PART = 0x410000
STAMPW = 0x800000
STG = 15504
U0 = 4*STG; UPH = 1184; UCH = 4*UPH
Y0 = U0 + 4*UCH; YBLK = 4352
MISC = Y0 + 4*YBLK + 544
C_U, C_Y, C_ST, C_W, C_F, SEL = 0, 4, 20, 24, 28, 32
XCH = MISC + 64; FRED = XCH + 512
W0 = Y0 + 20480; WU = W0 + 16384; WD = W0 + 32768; WDS = 1056
LDS_TOTAL = WD + 16*WDS
CAR = 4368
KXO = 40
LOG2E = "0x3fb8aa3b"; NLOG2E = "0xbfb8aa3b"; INV2PI = "0x3e22f983"
TIMEOUT = 20000

A = Asm()
WSADD = f"s_add_u32 s40, s40, {OPT['wsb']<<20}\ns_addc_u32 s41, s41, 0" if OPT['wsb'] else ""
def vr(b, n): return f"v[{b}:{b+n-1}]"
def sr(b, n=2): return f"s[{b}:{b+n-1}]"
nstamp = [0]
def fs(i): return f"s_memrealtime s[{64+2*i}:{65+2*i}]" if OPT["fine"] else ""
def stamp(i):
    if OPT["fine"] and i >= 6: return
    if OPT["ffs"] and 9 <= i <= 14: return
    if STAMPS: A(f"s_memrealtime s[{64+2*i}:{65+2*i}]")
    if STAMPS and OPT["iso"] and i < 8: A(f"s_memtime s[{80+2*i}:{81+2*i}]")
def ffs(i):
    if OPT["ffs"]: A(f"s_memrealtime s[{64+2*i}:{65+2*i}]")
def stamp_flush(who):
    if not STAMPS: return
    if OPT["amp"]:
        if OPT["amp"] != who: return
        i, j = OPT["ampi"], OPT["ampj"]; l = A.newlab("AMP"); d = A.newlab("AMD")
        A(f"""s_waitcnt lgkmcnt(0)
        s_cmp_eq_u32 s{64+2*j}, 0
        s_cbranch_scc1 {d}
        s_sub_u32 s60, s{64+2*j}, s{64+2*i}
        s_min_u32 s60, s60, 3000
        s_mul_i32 s60, s60, 10
        s_memrealtime s[62:63]
        s_waitcnt lgkmcnt(0)
        s_add_u32 s60, s60, s62
        {l}:
        s_memrealtime s[62:63]
        s_waitcnt lgkmcnt(0)
        s_sub_u32 s61, s60, s62
        s_cmp_gt_i32 s61, 0
        s_cbranch_scc1 {l}
        {d}:""")
        return
    A(f"""s_lshl_b32 s60, s2, 3
    s_add_u32 s60, s60, s3
    s_lshl_b32 s60, s60, 7
    s_add_u32 s60, s60, {STAMPW}
    s_load_dwordx2 s[40:41], s[0:1], 128
    v_mov_b32 v1, s60
    s_mov_b64 exec, 1
    s_waitcnt lgkmcnt(0)""")
    for i in range(16):
        A(f"v_mov_b32 v2, s{64+2*i}\nv_mov_b32 v3, s{65+2*i}\nglobal_store_dwordx2 v1, v[2:3], s[40:41] offset:{8*i}")

def signal(off, vM, vOne):
    A(f"s_mov_b64 exec, 1\nds_add_u32 v{vM}, v{vOne} offset:{off}\ns_mov_b64 exec, -1")
def spin(off, target, vM, vT, extra="", nonzero=False):
    l = A.newlab("SPIN"); d = A.newlab("SPD")
    A(f"s_mov_b32 s59, 0")
    A.lab(l)
    A(f"ds_read_b32 v{vT}, v{vM} offset:{off}")
    if extra: A(extra)
    A(f"""s_add_u32 s59, s59, 1
    s_cmp_gt_u32 s59, {TIMEOUT*16}
    s_cbranch_scc1 {d}
    s_waitcnt lgkmcnt(0)
    v_readfirstlane_b32 s58, v{vT}""")
    A(f"s_cmp_eq_u32 s58, 0" if nonzero else f"s_cmp_lt_u32 s58, {target}")
    A(f"s_cbranch_scc1 {l}")
    A.lab(d)
    A("s_waitcnt lgkmcnt(0)")

vM, vOne, vT = 1, 2, 3
AF, ACC, XT, BB, RAW, DT = 16, 80, 144, 148, 180, 188
A(f"""s_cmp_ge_u32 s2, 256
s_cbranch_scc1 END
s_load_dwordx16 s[8:23], s[0:1], 0
s_load_dwordx16 s[24:39], s[0:1], 64
s_load_dwordx2 s[40:41], s[0:1], 128""")
stamp(0)
A(f"""s_getpc_b64 s[46:47]
PC0:
s_lshr_b32 s43, s2, 3
s_lshl_b32 s45, s43, 10
v_and_b32 v1, 0x1e0, v0
v_lshl_add_u32 v1, v1, 1, s45
v_min_u32 v1, END-PC0, v1
global_load_dword v250, v1, s[46:47]""")
if STAMPS:
    for i in range(1, 16): A(f"s_mov_b64 s[{64+2*i}:{65+2*i}], 0")
A(f"""v_lshrrev_b32 v1, 6, v0
v_and_b32 v0, 63, v0
v_readfirstlane_b32 s3, v1
s_and_b32 s42, s2, 7
s_and_b32 s44, s43, 15
s_lshr_b32 s5, s43, 4
s_lshl_b32 s4, s42, 4
s_add_u32 s4, s4, s44
s_and_b32 s7, s3, 3
s_mov_b32 s56, 0xffff0000
s_cmp_gt_u32 s3, 3
s_cbranch_scc1 IOF""")
A(f"""v_mov_b32 v4, 0
v_mov_b32 v5, 0
v_mov_b32 v6, 0
v_mov_b32 v7, 0
v_lshlrev_b32 v8, 2, v0
v_add_u32 v8, {MISC}, v8
ds_write_b32 v8, v4
v_and_b32 v12, 15, v0
v_lshrrev_b32 v13, 4, v0
s_mul_i32 s51, s7, {UCH}
s_add_u32 s51, s51, {U0}
v_mul_u32_u24 v8, {UPH}, v13
v_lshl_add_u32 v8, v12, 3, v8
v_add_u32 v8, s51, v8
ds_write_b64 v8, v[4:5]
s_mul_i32 s50, s7, {STG}
s_mov_b32 m0, s50
v_mov_b32 v{vM}, {MISC}
v_mov_b32 v{vOne}, 1
v_mov_b32 v8, 0x3f80
ds_write_addtid_b32 v8 offset:0
v_mul_u32_u24 v9, 272, v12
v_lshl_add_u32 v9, v13, 4, v9
v_add_u32 v9, s50, v9
s_lshl_b32 s42, s4, 2
s_add_u32 s42, s42, s7
s_lshl_b32 s43, s42, 8
v_lshl_add_u32 v8, v0, 2, s43
s_lshl_b32 s43, s42, 1
s_and_b32 s43, s43, -4
{fs(6)}
s_waitcnt lgkmcnt(0)
{fs(7)}
s_load_dword s44, s[22:23], s43""")
for i in range(6): A(f"global_load_dword v{RAW+i}, v8, s[{10+2*i}:{11+2*i}]")
A(f"""s_barrier
{fs(8)}
s_branch KG0""")

XA, XB, WR = 16, 24, 32
D = "row_mask:0xf bank_mask:0xf"
A(f"""IOF:
s_setprio 2
s_lshr_b32 s45, s2, 2
s_lshl_b32 s45, s45, 5
s_and_b32 s46, s2, 3
s_lshl2_add_u32 s45, s46, s45
v_and_b32 v4, 4, v0
v_and_b32 v5, 3, v0
v_lshl_or_b32 v4, v4, 2, v5
v_add_u32 v6, s45, v4
v_lshrrev_b32 v7, 3, v0
s_lshl_b32 s45, s7, 8
v_lshl_add_u32 v8, v7, 4, s45
v_lshl_add_u32 v9, v6, 10, v8
v_mov_b32 v10, {EPOCH}
s_lshl_b32 s48, s4, 3
{fs(6)}
s_waitcnt lgkmcnt(0)
{fs(7)}
global_load_dwordx4 {vr(XA,4)}, v9, s[8:9]
global_load_dwordx4 {vr(XB,4)}, v9, s[8:9] offset:128
global_load_dwordx4 {vr(WR,4)}, v8, s[28:29]
global_load_dwordx4 {vr(WR+4,4)}, v8, s[28:29] offset:128
{WSADD}
global_load_dword v11, v10, s[40:41] sc1
s_load_dwordx2 s[54:55], s[24:25], s48
s_barrier
{fs(8)}
s_mul_i32 s6, s42, 11
s_add_u32 s6, s6, s44
s_cmp_lt_u32 s44, 11
s_cselect_b32 s6, s6, 999
s_cmp_eq_u32 s5, 1
s_cselect_b32 s6, s6, 999
s_add_u32 s46, s7, 2
s_add_u32 s44, s7, 4
s_cmp_lt_u32 s7, 2
s_cselect_b32 s44, s7, s44
s_cselect_b32 s52, s7, 5
s_cmp_eq_u32 s5, 0
s_cselect_b32 s51, s44, s46
s_cselect_b32 s52, s46, s52
v_mov_b32 v{vM}, {MISC}
v_mov_b32 v{vOne}, 1
v_and_b32 v10, 7, v0
v_lshrrev_b32 v13, 4, v0
s_lshl_b32 s44, s7, 2
s_add_u32 s44, s44, {XCH}
v_lshl_add_u32 v8, v13, 4, s44
v_lshl_add_u32 v8, v10, 6, v8
v_lshlrev_b32 v14, 6, v10
v_add_u32 v14, {XCH}, v14
s_lshl_b32 s44, s7, 20
s_lshl_b32 s45, s2, 7
s_add_u32 s44, s44, s45
v_lshl_add_u32 v15, v7, 16, s44
v_lshl_add_u32 v15, v10, 4, v15
v_lshlrev_b32 v60, 9, v7
v_lshl_add_u32 v60, v10, 4, v60
s_lshl_b32 s47, s4, 15
s_lshl_b32 s44, s51, 12
s_add_u32 s44, s44, s47
v_add_u32 v236, s44, v60
s_lshl_b32 s44, s52, 12
s_add_u32 s44, s44, s47
v_add_u32 v235, s44, v60
v_lshl_add_u32 v4, v7, 5, v4
v_lshrrev_b32 v7, 2, v0
s_add_u32 s46, s48, 4096
s_lshl_b32 s44, s51, 18
s_add_u32 s44, s44, s46
v_lshl_add_u32 v243, v4, 10, s44
v_add_u32 v239, 8192, v243
v_and_b32 v12, 15, v0
s_lshl_b32 s46, s43, 2
s_add_u32 s46, s46, s7
v_mul_u32_u24 v9, {UPH}, v5
v_lshl_add_u32 v9, v7, 3, v9
s_lshl_b32 s44, s51, 7
s_add_u32 s44, s44, {U0+128}
v_add_u32 v244, s44, v9
s_lshl_b32 s44, s52, 7
s_add_u32 s44, s44, {U0+128}
v_add_u32 v9, s44, v9
s_lshl2_add_u32 s53, s5, s7
v_and_b32 v238, 1, v0
v_lshrrev_b32 v60, 1, v0
v_mul_u32_u24 v60, 2752, v60
v_lshl_add_u32 v60, v238, 4, v60
s_lshl_b32 s44, s6, 5
v_add_u32 v240, s44, v60
s_lshl_b32 s44, s6, 14
v_lshl_add_u32 v60, v13, 10, s44
v_lshl_add_u32 v241, v12, 4, v60
s_mul_i32 s44, s46, {4*2752}
s_mul_i32 s47, s42, 352
s_add_u32 s44, s44, s47
v_mul_u32_u24 v61, 2752, v13
v_lshlrev_b32 v62, 6, v12
v_min_u32 v62, 348, v62
v_add3_u32 v245, v61, v62, s44
v_min_u32 v245, {512*2752-4}, v245
s_mul_i32 s44, s46, 1408
s_mul_i32 s47, s42, {176*1024}
s_add_u32 s44, s44, s47
v_min_u32 v62, 21, v0
v_lshl_add_u32 v246, v62, 6, s44
v_min_u32 v246, {1376*1024-4}, v246
v_lshl_add_u32 v238, v238, 4, v{vM}
s_add_u32 s44, s40, 32768
s_addc_u32 s45, s41, 0
s_add_u32 s46, s40, 524288
s_addc_u32 s47, s41, 0
s_add_u32 s48, s40, 557056
s_addc_u32 s49, s41, 0
s_mov_b32 s57, 0x3f803f80""")
if OPT["iso"]:
    signal(C_U, vM, vOne)
    A("s_branch FIN")
def iopf():
    A("global_load_dword v247, v245, s[30:31]\nglobal_load_dword v248, v245, s[32:33]\nglobal_load_dword v249, v246, s[34:35]")
if OPT["wpf"] == 6: iopf()
A(f"{fs(10)}\ns_waitcnt vmcnt({4 if OPT['wpf'] == 6 else 1})")
stamp(1)
if OPT["wpf"] == 5: iopf()
xs = [XA+i for i in range(4)] + [XB+i for i in range(4)]
for i in range(8):
    c = lambda r: "0" if i == 0 else f"v{r}"
    A(f"""v_dot2_f32_bf16 v40, v{xs[i]}, s57, {c(40)}
    v_dot2_f32_bf16 v41, v{xs[i]}, v{xs[i]}, {c(41)}
    v_dot2_f32_bf16 v42, v{xs[i]}, v{WR+i}, {c(42)}
    v_dot2_f32_bf16 v43, v{WR+i}, s57, {c(43)}""")
A(f"""v_mov_b32 v{XA+4}, v{XA+2}
v_mov_b32 v{XA+5}, v{XA+3}
v_permlane32_swap_b32 v40, v41
v_mov_b32 v{XB+4}, v{XB+2}
v_permlane32_swap_b32 v42, v43
v_add_f32 v40, v40, v41
v_add_f32 v42, v42, v43
v_mov_b32 v{XB+5}, v{XB+3}
v_permlane16_swap_b32 v40, v42
v_add_f32 v40, v40, v42
v_add_f32_dpp v40, v40, v40 row_ror:8 {D}
ds_write_b32 v8, v40""")
signal(C_ST, vM, vOne)
if OPT["wpf"] == 7: iopf()
A(f"""{fs(11)}
s_waitcnt vmcnt({3 if OPT['wpf'] in (5,6,7) else 0})
{fs(12)}
v_add_u32 v11, 1, v11
v_mov_b32 v{XA+3}, v11
v_mov_b32 v{XA+7}, v11
v_mov_b32 v{XB+3}, v11
v_mov_b32 v{XB+7}, v11""")
spin(C_ST, 4, vM, vT, extra="\n".join(f"ds_read_b128 {vr(44+4*q,4)}, v14 offset:{16*q}" for q in range(4)))
for q in (0, 2, 1, 3):
    A(f"v_pk_add_f32 {vr(44+4*q,2)}, {vr(44+4*q,2)}, {vr(46+4*q,2)}")
A(f"""v_add_f32 v44, v44, v45
v_add_f32 v52, v52, v53
v_mul_f32 v44, 0x3b000000, v44
v_mul_f32 v52, 0x3b000000, v52
v_fma_f32 v52, -v44, v44, v52
v_max_f32 v52, 0, v52
v_cvt_pk_bf16_f32 v52, v52, v52
v_and_b32 v52, s56, v52
v_add_f32 v52, 0x3727c5ac, v52
v_cvt_pk_bf16_f32 v52, v52, v52
v_and_b32 v52, s56, v52
v_sqrt_f32 v52, v52
v_add_f32 v48, v48, v49
v_cvt_pk_bf16_f32 v{XA+2}, v44, v52
v_cvt_pk_bf16_f32 v{XA+6}, v44, v52
global_store_dwordx4 v15, {vr(XA,4)}, s[40:41] sc1
v_cvt_pk_bf16_f32 v{XB+2}, v44, v52
global_store_dwordx4 v15, {vr(XA+4,4)}, s[44:45] sc1
v_cvt_pk_bf16_f32 v{XB+6}, v44, v52
global_store_dwordx4 v15, {vr(XB,4)}, s[46:47] sc1
global_store_dwordx4 v15, {vr(XB+4,4)}, s[48:49] sc1""")
stamp(2)
KW = 2
A(f"""s_cmp_lg_u32 s7, {KW}
s_cbranch_scc1 NOKEYST
v_and_b32 v45, s56, v{XA+2}
v_lshlrev_b32 v46, 16, v{XA+2}
v_rcp_f32 v45, v45
v_add_f32 v56, v56, v57
v_fma_f32 v48, -v46, v56, v48
v_mul_f32 v48, v48, v45
v_cvt_pk_bf16_f32 v48, v48, v48
v_ashrrev_i32 v49, 31, v48
v_or_b32 v49, 0x80000000, v49
v_xor_b32 v48, v48, v49
v_lshlrev_b32 v49, 1, v6
v_or_b32 v49, 0x8000, v49
v_and_or_b32 v60, v48, s56, v49
v_max_u32_dpp v50, v60, v60 quad_perm:[1,0,3,2] {D}
v_max_u32_dpp v50, v50, v50 quad_perm:[2,3,0,1] {D}
v_max_u32_dpp v50, v50, v50 row_half_mirror {D}
v_cmp_ne_u32 vcc, v60, v50
v_cndmask_b32 v51, 0, v60, vcc
v_cndmask_b32 v53, 0, v{vOne}, vcc
v_max_u32_dpp v51, v51, v51 quad_perm:[1,0,3,2] {D}
v_max_u32_dpp v51, v51, v51 quad_perm:[2,3,0,1] {D}
v_max_u32_dpp v51, v51, v51 row_half_mirror {D}
s_lshl_b32 s43, s2, 5
s_add_u32 s43, s43, {KEYS}
v_cmp_ge_u32 vcc, v60, v51
v_or_b32 v60, v60, v53
v_mov_b32 v61, v{XA+2}
v_mov_b32 v62, v11
v_lshl_add_u32 v53, v53, 4, s43
s_and_b64 exec, vcc, 0xff
global_store_dwordx3 v53, v[60:62], s[40:41] sc1
s_mov_b64 exec, -1
NOKEYST:""")
if OPT["wpf"] == 4: iopf()
GA, GB, KV = 64, 80, 96
A("s_cmp_eq_u32 s53, 7\ns_cbranch_scc1 SERV")
if OPT["touch"]: A("s_branch TIO\nRIO:")
A(f"s_waitcnt vmcnt({OPT['dw']})" if OPT["wpf"] == 4 else "s_waitcnt vmcnt(0)")
stamp(3)
if OPT["dly"]:
    A(f"""s_add_u32 s58, s64, {OPT["dly"]}
    DLY:
    s_memrealtime s[60:61]
    s_waitcnt lgkmcnt(0)
    s_sub_u32 s59, s58, s60
    s_cmp_gt_i32 s59, 0
    s_cbranch_scc1 DLY""")
A("s_mov_b32 s59, 0")
A.lab("SWL")
for k in range(4): A(f"global_load_dwordx4 {vr(GB+4*k,4)}, v235, s[40:41] offset:{128*k} sc1")
for k in range(4): A(f"global_load_dwordx4 {vr(GA+4*k,4)}, v236, s[40:41] offset:{128*k} sc1")
A(f"""s_add_u32 s59, s59, 1
s_waitcnt vmcnt(0)
v_min3_u32 v16, v{GA+3}, v{GA+7}, v{GA+11}
v_max3_u32 v17, v{GA+3}, v{GA+7}, v{GA+11}
v_min3_u32 v16, v16, v{GA+15}, v{GB+3}
v_max3_u32 v17, v17, v{GA+15}, v{GB+3}
v_min3_u32 v16, v16, v{GB+7}, v{GB+11}
v_max3_u32 v17, v17, v{GB+7}, v{GB+11}
v_min3_u32 v16, v16, v{GB+15}, v11
v_max3_u32 v17, v17, v{GB+15}, v11
s_cmp_gt_u32 s59, {TIMEOUT}
v_cmp_ne_u32 vcc, v16, v17
s_cbranch_scc1 SWD
s_and_b64 exec, exec, vcc
s_cbranch_execnz SWL
SWD:
s_mov_b64 exec, -1""")
stamp(4)
if STAMPS: A("s_mul_i32 s58, s59, 100\ns_add_u32 s78, s64, s58\ns_addc_u32 s79, s65, 0")
R_, N_, P_ = 16, 20, 56
XA_, XNA, XB_, XNB = 24, 40, 128, 144
def norm(G, va, X_, XN_):
    for k in range(4): A(f"v_and_b32 v{R_+k}, s56, v{G+4*k+2}")
    for k in range(4): A(f"v_rcp_f32 v{R_+k}, v{R_+k}\nv_lshlrev_b32 v{N_+k}, 16, v{G+4*k+2}")
    for k in range(4): A(f"v_lshlrev_b32 v{X_+k}, 16, v{G+4*k}")
    for h in range(2): A(f"v_pk_mul_f32 {vr(N_+2*h,2)}, {vr(N_+2*h,2)}, {vr(R_+2*h,2)} neg_lo:[1,0] neg_hi:[1,0]")
    for j in range(4):
        if j < 3:
            jj = j+1
            for k in range(4):
                if jj & 1: A(f"v_and_b32 v{X_+4*jj+k}, s56, v{G+4*k+(jj>>1)}")
                else: A(f"v_lshlrev_b32 v{X_+4*jj+k}, 16, v{G+4*k+(jj>>1)}")
        for h in range(2): A(f"v_pk_fma_f32 {vr(XN_+4*j+2*h,2)}, {vr(X_+4*j+2*h,2)}, {vr(R_+2*h,2)}, {vr(N_+2*h,2)}")
        for h in range(2): A(f"v_cvt_pk_bf16_f32 v{P_+2*j+h}, v{XN_+4*j+2*h}, v{XN_+4*j+2*h+1}")
        A(f"ds_write_b64 v{va}, {vr(P_+2*j,2)} offset:{j*UCH}")
norm(GB, 9, XB_, XNB)
norm(GA, 244, XA_, XNA)
signal(C_U, vM, vOne)
stamp(5)
A("""s_setprio 0
s_cmp_eq_u32 s53, 3
s_cbranch_scc1 KEYSR
s_branch AFTK""")

def service():
    A.lab("SERV")
    A(f"""s_cmp_gt_u32 s6, 85
    s_cbranch_scc1 SNOF
    s_mov_b32 s42, {W0}
    s_mov_b32 s43, {WD}""")
    if OPT["sw"]: A("s_waitcnt vmcnt(0)" if OPT["sw"] == 1 else "s_waitcnt vmcnt(3)")
    stamp(13)
    if OPT["nodma"]: A("s_branch KEYSR")
    A.lab("SVL")
    for i in range(4):
        A(f"""s_mov_b32 m0, s42
        s_add_u32 s44, s42, 16384
        global_load_lds_dwordx4 v240, s[30:31]
        s_mov_b32 m0, s44
        s_add_u32 s42, s42, 1024
        global_load_lds_dwordx4 v240, s[32:33]
        v_add_u32 v240, {32*2752}, v240""")
    A(f"s_cmp_lt_u32 s42, {W0+16384}\ns_cbranch_scc1 SVL")
    A.lab("KEYSR")
    A(f"""v_lshlrev_b32 v18, 5, v0
    v_add_u32 v18, {KEYS+4096}, v18
    s_mov_b32 s48, 0
    KPOLL:""")
    for i in range(8):
        A(f"global_load_dwordx3 {vr(KV+4*i,3)}, v18, s[40:41] offset:{2048*(i>>1)-4096+16*(i&1)} sc1")
    A(f"""s_add_u32 s48, s48, s53
    s_cmp_lg_u32 s48, 7
    s_cbranch_scc1 KW0""")
    if not OPT["nodma"]:
        A("SVD:")
        for i in range(4):
            A(f"""s_mov_b32 m0, s43
            s_add_u32 s43, s43, {WDS}
            global_load_lds_dwordx4 v241, s[34:35]
            v_add_u32 v241, {4096 if i < 3 else 256-3*4096}, v241""")
        A(f"s_cmp_lt_u32 s43, {WD+16*WDS}\ns_cbranch_scc1 SVD")
    stamp(12)
    A(f"""v_lshrrev_b32 v14, 2, v12
    v_lshlrev_b32 v15, 8, v13
    v_lshl_add_u32 v15, v14, 5, v15
    v_lshl_add_u32 v15, v5, 3, v15
    v_add_u32 v15, {W0}, v15
    s_mov_b32 s57, {WDS}
    v_lshlrev_b32 v14, 8, v14
    v_mad_u32_u24 v14, v13, s57, v14
    v_lshl_add_u32 v14, v5, 3, v14
    v_add_u32 v14, {WD}, v14
    v_lshrrev_b32 v8, 1, v12
    v_lshl_add_u32 v8, v8, 2, v13
    v_lshlrev_b32 v8, 4, v8
    v_and_b32 v9, 1, v0
    v_lshl_add_u32 v9, v9, 11, v8
    s_lshl_b32 s42, s6, 12
    s_add_u32 s42, s42, {PART}
    v_add_u32 v9, s42, v9
    v_bfe_i32 v10, v0, 1, 1
    s_waitcnt vmcnt({0 if OPT["nodma"] else 16})
    s_branch KW1
    SNOF:
    s_mov_b32 s53, 5
    s_setprio 0""")
    spin(C_U, 3, vM, vT)
    A(f"""s_branch KEYSR
    KW0:
    s_waitcnt vmcnt(0)
    KW1:
    v_min3_u32 v16, v{KV+2}, v{KV+6}, v{KV+10}
    v_max3_u32 v17, v{KV+2}, v{KV+6}, v{KV+10}
    v_min3_u32 v16, v16, v{KV+14}, v{KV+18}
    v_max3_u32 v17, v17, v{KV+14}, v{KV+18}
    v_min3_u32 v16, v16, v{KV+22}, v{KV+26}
    v_max3_u32 v17, v17, v{KV+22}, v{KV+26}
    v_min3_u32 v16, v16, v{KV+30}, v11
    v_max3_u32 v17, v17, v{KV+30}, v11
    s_cmp_gt_u32 s48, {TIMEOUT*7}
    v_cmp_ne_u32 vcc, v16, v17
    s_cbranch_scc1 KDONE
    s_and_b64 exec, exec, vcc
    s_cbranch_execnz KPOLL
    KDONE:
    s_mov_b64 exec, -1""")
    def k1(p): return KV+8*p
    def k2(p): return KV+8*p+4
    for a, b in ((0,1),(2,3),(0,2)):
        A(f"""v_min_u32 v16, v{k1(a)}, v{k1(b)}
        v_max_u32 v{k1(a)}, v{k1(a)}, v{k1(b)}
        v_max3_u32 v{k2(a)}, v{k2(a)}, v{k2(b)}, v16""")
    m1, m2 = k1(0), k2(0)
    for pat in ("quad_perm:[1,0,3,2]", "quad_perm:[2,3,0,1]", "row_half_mirror", "row_mirror"):
        A(f"""v_min_u32_dpp v16, v{m1}, v{m1} {pat} {D}
        v_max_u32_dpp v{m1}, v{m1}, v{m1} {pat} {D}
        v_max_u32_dpp v{m2}, v{m2}, v{m2} {pat} {D}
        v_max_u32 v{m2}, v{m2}, v16""")
    A("s_mov_b32 vcc_lo, 0xaaaaaaaa\ns_mov_b32 vcc_hi, 0xaaaaaaaa")
    for i in range(4): A(f"v_readlane_b32 s{96+i}, v{m1}, {16*i}")
    for i in range(4): A(f"v_readlane_b32 s{60+i}, v{m2}, {16*i}")
    for a, b in ((0,1),(2,3),(0,2)):
        A(f"""s_min_u32 s48, s{96+a}, s{96+b}
        s_max_u32 s{96+a}, s{96+a}, s{96+b}
        s_max_u32 s{60+a}, s{60+a}, s{60+b}
        s_max_u32 s{60+a}, s{60+a}, s48""")
    A(f"""v_mov_b32 v16, s96
    s_or_b32 s60, s60, 0x8000
    v_mov_b32 v17, s60
    v_cndmask_b32 v16, v16, v17, vcc
    v_bfe_u32 v17, v16, 1, 11
    s_cmp_lg_u32 s53, 7
    s_cbranch_scc1 KNX
    v_lshl_add_u32 v8, v17, 10, v8
    global_load_dwordx4 v[24:27], v8, s[8:9]
    global_load_dwordx4 v[28:31], v8, s[8:9] offset:512
    KNX:
    v_bfe_u32 v19, v16, 6, 6
    v_bfe_u32 v18, v16, 3, 2
    v_lshl_or_b32 v18, v19, 2, v18
    v_and_b32 v19, 1, v16
    v_lshl_or_b32 v18, v18, 1, v19
    v_lshlrev_b32 v18, 4, v18
    v_add_u32 v18, {KEYS+4}, v18
    ds_write_b128 v238, v[16:19] offset:{SEL}""")
    stamp(15)
    A(f"""s_cbranch_scc0 FFN
    s_cmp_eq_u32 s53, 5
    s_cbranch_scc1 FINS
    s_cmp_lg_u32 s2, 0
    s_cbranch_scc1 AFTK
    v_mov_b32 v16, {EPOCH}
    global_store_dword v16, v11, s[40:41] sc1
    s_branch AFTK
    FFN:
    global_load_dword v32, v18, s[40:41] sc1""")
    FA, FD, RB, DG, BD, DD = 64, 192, 44, 56, 64, 80
    for c in range(16):
        for m in range(2):
            for h in range(2):
                A(f"ds_read_b64_tr_b16 {vr(FA+8*c+4*m+2*h,2)}, v15 offset:{m*16384+c*1024+128*h}")
    ffs(9)
    A("s_waitcnt vmcnt(3)")
    for c in range(4):
        for w in range(4):
            for t in range(2):
                A(f"ds_read_b64_tr_b16 {vr(FD+16*c+4*w+2*t,2)}, v14 offset:{w*4*WDS+64*c+32*t}")
    ffs(10)
    A("s_waitcnt vmcnt(0)")
    stamp(7)
    def nrm(N):
        o = []
        for i in range(4): o += [f"v_lshlrev_b32 v{34+2*i}, 16, v{N+i}", f"v_and_b32 v{35+2*i}, s56, v{N+i}"]
        for i in range(8): o.append(f"v_fma_f32 v{34+i}, v{34+i}, v33, v32")
        for i in range(4): o.append(f"v_cvt_pk_bf16_f32 v{N+i}, v{34+2*i}, v{35+2*i}")
        return o
    n0 = nrm(24)
    A(f"""v_and_b32 v33, s56, v32
    v_rcp_f32 v33, v33
    v_lshlrev_b32 v32, 16, v32""")
    for t in n0[:8]: A(t)
    A("v_mul_f32_e64 v32, -v32, v33")
    for t in n0[8:]: A(t)
    def breg(c): return (24 + 4*(c>>3)) if (c & 7) == 0 else RB + 4*(c % 3)
    def movs(c):
        if c > 15 or (c & 7) == 0: return []
        return [f"v_mov_b32_dpp v{breg(c)+i}, v{24+4*(c>>3)+i} row_shl:{2*(c&7)} {D} bound_ctrl:0" for i in range(4)]
    fill = nrm(28) + [f"v_mov_b32 v{BD+i}, 0" for i in range(16)]
    for t in movs(1): A(t)
    A("s_waitcnt lgkmcnt(0)")
    for c in range(16):
        q = movs(c+2)
        nf = 3 if c < 7 else 2
        if c == 6: nf = 20 - 3*6
        q += fill[:nf]; fill = fill[nf:]
        for m in range(2):
            A(f"v_mfma_f32_16x16x32_bf16 {vr(DG+4*m,4)}, {vr(FA+8*c+4*m,4)}, {vr(breg(c),4)}, " + ("0" if c == 0 else vr(DG+4*m,4)))
            h = (len(q)+1)//2
            for t in (q[:h] if m == 0 else q[h:]): A(t)
    assert not fill
    ffs(11)
    for i in range(4): A(f"s_mov_b32 s{96+i}, {hex(0x07060500+i)}")
    for i in range(1, 4):
        for m in range(2): A(f"v_mov_b32_dpp v{DG+4*m}, v{DG+4*m+i} row_shr:{2*i} {D}")
    FB = 34
    A(f"""v_cvt_pk_bf16_f32 v{FB}, v{DG}, v{DG+4}
    v_lshlrev_b32 v{FB+1}, 16, v{FB}
    v_mul_f32 v{FB+2}, {NLOG2E}, v{FB+1}
    v_exp_f32 v{FB+2}, v{FB+2}
    v_and_b32 v{FB}, s56, v{FB}
    v_add_f32 v{FB+2}, 1.0, v{FB+2}
    v_rcp_f32 v{FB+2}, v{FB+2}
    v_mul_f32 v{FB+1}, v{FB+1}, v{FB+2}
    v_cvt_pk_bf16_f32 v{FB+1}, v{FB+1}, v{FB+1}
    v_and_b32 v{FB+1}, s56, v{FB+1}
    v_mul_f32 v{FB}, v{FB}, v{FB+1}
    v_mov_b32_dpp v{FB+1}, v{FB} quad_perm:[0,1,0,1] {D}
    v_mov_b32_dpp v{FB+2}, v{FB} quad_perm:[2,3,2,3] {D}
    v_cvt_pk_bf16_f32 v{FB}, v{FB+1}, v{FB+2}
    v_and_b32 v{FB+1}, v10, v{FB}
    v_bfi_b32 v{FB}, v10, 0, v{FB}""")
    ffs(13)
    def dm(c):
        if c > 3: return []
        o = []
        for t in (1, 0):
            for i1 in range(2):
                d = c - i1
                pat = "quad_perm:[0,1,2,3]" if d == 0 else (f"row_shr:{4*d}" if d > 0 else "row_shl:4")
                o.append(f"v_mov_b32_dpp v{BD+4*c+2*t+i1}, v{FB+t} {pat} row_mask:0xf bank_mask:{hex(1<<c)}")
        return o
    for t in dm(0) + dm(1)[:2]: A(t)
    rest = dm(1)[2:] + dm(2) + dm(3)
    for c in range(4):
        for w in range(4):
            A(f"v_mfma_f32_16x16x32_bf16 {vr(DD+4*w,4)}, {vr(FD+16*c+4*w,4)}, {vr(BD+4*c,4)}, " + ("0" if c == 0 else vr(DD+4*w,4)))
            for t in rest[:2]: A(t)
            rest = rest[2:]
    ffs(14)
    for w in range(4):
        for i in range(4): A(f"v_perm_b32 v{DD+4*w+i}, v{DD+4*w+i}, v11, s{96+i}")
        A(f"global_store_dwordx4 v9, {vr(DD+4*w,4)}, s[40:41] offset:{512*w} sc1")
    A("s_setprio 0")
    stamp(8)
    A("s_branch FINS")

A(".p2align 12")
if OPT["touch"]: A("TIO:\ns_branch RIO")
A.lab("AFTK")
GG, CC, YY, GG2, CC2 = 64, 80, 96, 160, 176
def precompute(X_, XN_, GG, CC):
    for j in range(4):
        for k in range(4): A(f"v_mul_f32 v{16+k}, {NLOG2E}, v{XN_+4*j+k}")
        for k in range(4): A(f"v_exp_f32 v{16+k}, v{16+k}")
        for k in range(4): A(f"v_mul_f32 v{20+k}, s{44+j}, v{XN_+4*j+k}")
        for k in range(4): A(f"v_add_f32 v{16+k}, 1.0, v{16+k}")
        for k in range(4): A(f"v_rcp_f32 v{16+k}, v{16+k}")
        for k in range(4): A(f"v_mul_f32 v{GG+4*k+j}, v{16+k}, v{XN_+4*j+k}")
        for k in range(4): A(f"v_fma_f32 v{CC+4*k+j}, v{20+k}, v{GG+4*k+j}, v{X_+4*j+k}")
A("""s_lshl_b32 s44, s54, 16
s_and_b32 s45, s54, s56
s_lshl_b32 s46, s55, 16
s_and_b32 s47, s55, s56""")
precompute(XA_, XNA, GG, CC)
A("s_cmp_lg_u32 s53, 6\ns_cbranch_scc1 NOP2")
precompute(XB_, XNB, GG2, CC2)
A.lab("NOP2")
A(f"""s_lshl_b32 s42, s51, 8
v_add_u32 v8, s42, v4
v_mul_u32_u24 v10, 272, v7
v_lshl_add_u32 v10, v5, 4, v10
s_mul_i32 s42, s7, {YBLK}
s_add_u32 s42, s42, {Y0}
v_add_u32 v10, s42, v10
s_lshl_b32 s42, s7, 2
v_add_u32 v14, s42, v{vM}""")
stamp(9)
spin(SEL+16, 0, vM, vT, extra=f"ds_read_b32 v21, v238 offset:{SEL+4}", nonzero=True)
stamp(6)
A("v_readlane_b32 s62, v21, 0\nv_readlane_b32 s63, v21, 1")
def masks(add, sb):
    for k in range(4):
        A(f"""v_add_u32 v9, {add+4*k}, v8
        v_cmp_ne_u32 vcc, s62, v9
        v_cmp_ne_u32 {sr(96)}, s63, v9
        s_and_b64 {sr(sb+2*k)}, vcc, {sr(96)}""")
def epi(blk, GG, CC, sb):
    if OPT["st2"]: spin(C_Y+4*blk, OPT["st2"], 14, vT)
    spin(C_Y+4*blk, 4, 14, vT, extra="\n".join(f"ds_read_b128 {vr(YY+4*k,4)}, v10 offset:{64*k+blk*YBLK}" for k in range(4)))
    stamp(10)
    for k in range(4):
        if OPT["epk"]:
            for h in range(2): A(f"v_pk_fma_f32 {vr(YY+4*k+2*h,2)}, {vr(YY+4*k+2*h,2)}, {vr(GG+4*k+2*h,2)}, {vr(CC+4*k+2*h,2)}")
        else:
            for h in range(4): A(f"v_fma_f32 v{YY+4*k+h}, v{YY+4*k+h}, v{GG+4*k+h}, v{CC+4*k+h}")
        for h in range(2): A(f"v_cvt_pk_bf16_f32 v{YY+4*k+h}, v{YY+4*k+2*h}, v{YY+4*k+2*h+1}")
        A(f"s_mov_b64 exec, {sr(sb+2*k)}")
        A(f"global_store_dwordx2 v{239 if k>>1 else 243}, {vr(YY+4*k,2)}, s[36:37] offset:{-4096 if (k&1)==0 else 0}")
        A("s_mov_b64 exec, -1")
    stamp(11)
masks(0, 44)
A("s_cmp_lg_u32 s53, 6\ns_cbranch_scc1 EPI")
masks(256, 10)
A.lab("EPI")
epi(0, GG, CC, 44)
A("""s_cmp_eq_u32 s53, 0
s_cbranch_scc1 FINS
s_cmp_lg_u32 s53, 6
s_cbranch_scc1 FIN
s_add_u32 s36, s36, 0x40000
s_addc_u32 s37, s37, 0""")
YY = 112
epi(1, GG2, CC2, 10)
A("s_branch FIN")
A(f"""FINS:
v_lshrrev_b32 v16, 5, v0
v_lshl_add_u32 v17, v16, 4, v{vM}
ds_read_b128 v[20:23], v17 offset:{SEL}
v_bfe_u32 v13, v0, 3, 2
s_lshl_b32 s45, s4, 3
v_lshl_add_u32 v18, v13, 1, s45
v_and_b32 v19, 31, v0
s_lshl_b32 s44, s4, 4
s_add_u32 s44, s44, {PART}
v_lshl_add_u32 v16, v16, 11, s44
v_lshl_add_u32 v117, v19, 12, v16
v_add_u32 v118, {32*4096}, v117
v_min_u32 v19, 21, v19
v_lshl_add_u32 v119, v19, 12, v16
v_add_u32 v119, {64*4096}, v119
s_waitcnt lgkmcnt(0)
v_lshrrev_b32 v16, 8, v21
v_add_u32 v17, 6, v16
v_bfe_u32 v17, v17, 2, 1
v_cmp_ne_u32 s[100:101], s5, v17
v_lshl_add_u32 v116, v21, 10, v18
s_cmp_eq_u64 s[100:101], 0
s_cbranch_scc1 FIN
global_load_ushort v112, v116, s[8:9]
global_load_dword v113, v22, s[40:41] sc1
global_load_ushort v114, v18, s[24:25]
s_lshl_b32 s44, s5, 1
v_add_u32 v16, s44, v16
v_and_b32 v16, 3, v16
v_lshl_add_u32 v121, v16, 2, v{vM}
v_mul_u32_u24 v16, {YBLK}, v16
v_bfe_u32 v17, v21, 4, 4
v_mul_u32_u24 v17, 272, v17
v_and_b32 v19, 15, v21
v_lshl_add_u32 v17, v19, 4, v17
v_lshl_add_u32 v17, v13, 2, v17
s_mov_b32 s44, {Y0}
v_add3_u32 v120, v16, v17, s44
v_ashrrev_i32 v16, 31, v20
v_not_b32 v16, v16
v_or_b32 v16, 0x80000000, v16
v_xor_b32 v16, v16, v20
v_and_b32 v16, s56, v16
v_mul_f32 v115, {NLOG2E}, v16
v_exp_f32 v115, v115
s_mov_b32 s54, 0x0c0c0400
s_mov_b32 s55, 0x04000c0c
v_add_f32 v115, 1.0, v115
v_rcp_f32 v115, v115
s_mov_b32 s52, 0
s_waitcnt vmcnt(0)
v_cvt_pk_bf16_f32 v115, v115, v115
v_and_b32 v115, s56, v115
v_lshlrev_b32 v112, 16, v112
v_lshlrev_b32 v114, 16, v114
v_and_b32 v20, s56, v113
v_lshlrev_b32 v113, 16, v113
v_rcp_f32 v20, v20
v_sub_f32 v113, v112, v113
v_cvt_pk_bf16_f32 v113, v113, v113
v_and_b32 v113, s56, v113
v_mul_f32 v113, v113, v20
v_cvt_pk_bf16_f32 v113, v113, v113
v_and_b32 v113, s56, v113
v_mul_f32 v114, v114, v113
v_cvt_pk_bf16_f32 v114, v114, v114
v_and_b32 v114, s56, v114""")
spin(C_Y+4*OPT["pg"], 4, vM, vT)
stamp(3 if not OPT["ffs"] else 12)
A(f"""s_mov_b64 exec, s[100:101]
PPOLL:
global_load_dwordx4 v[24:27], v117, s[40:41] sc1
global_load_dwordx4 v[28:31], v118, s[40:41] sc1
global_load_dwordx4 v[32:35], v119, s[40:41] sc1
s_add_u32 s52, s52, 1
s_waitcnt vmcnt(0)
v_perm_b32 v16, v25, v24, s54
v_perm_b32 v17, v27, v26, s55
v_perm_b32 v18, v29, v28, s54
v_perm_b32 v19, v31, v30, s55
v_perm_b32 v20, v33, v32, s54
v_perm_b32 v21, v35, v34, s55
v_or_b32 v16, v16, v17
v_or_b32 v18, v18, v19
v_or_b32 v20, v20, v21
v_min3_u32 v17, v16, v18, v20
v_max3_u32 v19, v16, v18, v20
v_min_u32 v17, v17, v11
v_max_u32 v19, v19, v11
s_cmp_gt_u32 s52, {TIMEOUT}
v_cmp_ne_u32 vcc, v17, v19
s_cbranch_scc1 PDONE
s_and_b64 exec, exec, vcc
s_cbranch_execnz PPOLL
PDONE:""")
stamp(12)
A(f"""s_mov_b32 exec_lo, 0x3fffff
s_mov_b32 exec_hi, 0x3fffff
v_add_f32 v24, v24, v32
v_add_f32 v26, v26, v34
v_add_f32 v25, v25, v33
v_add_f32 v27, v27, v35
s_mov_b64 exec, -1
v_add_f32 v24, v24, v28
v_add_f32 v26, v26, v30
v_add_f32 v25, v25, v29
v_add_f32 v27, v27, v31
v_permlane16_swap_b32 v24, v26
v_permlane16_swap_b32 v25, v27
v_add_f32 v24, v24, v26
v_add_f32 v25, v25, v27
v_add_f32_dpp v24, v24, v24 row_ror:8 row_mask:0xf bank_mask:0x3
v_add_f32_dpp v24, v25, v25 row_ror:8 row_mask:0xf bank_mask:0xc
v_add_f32_dpp v24, v24, v24 row_half_mirror {D}
v_add_f32_dpp v24, v24, v24 quad_perm:[1,0,3,2] {D}
v_add_f32_dpp v24, v24, v24 quad_perm:[2,3,0,1] {D}
v_cvt_pk_bf16_f32 v24, v24, v24
v_and_b32 v24, s56, v24
v_mul_f32 v24, v24, v115
v_cvt_pk_bf16_f32 v24, v24, v24
v_and_b32 v24, s56, v24
v_add_f32 v24, v24, v113
v_cvt_pk_bf16_f32 v24, v24, v24
v_and_b32 v24, s56, v24
v_mul_f32 v25, {NLOG2E}, v24
v_exp_f32 v25, v25
s_mov_b32 s44, 0x01010101
s_mov_b32 s45, 0x01010101
v_add_f32 v25, 1.0, v25
v_rcp_f32 v25, v25
s_mov_b32 s59, 0
s_and_b64 exec, s[44:45], s[100:101]
v_mul_f32 v24, v24, v25
v_cvt_pk_bf16_f32 v24, v24, v24
v_and_b32 v24, s56, v24
FSP:
ds_read_b32 v{vT}, v121 offset:{C_Y}
ds_read_b32 v26, v120
s_add_u32 s59, s59, 1
s_cmp_gt_u32 s59, {TIMEOUT*16}
s_waitcnt lgkmcnt(0)
v_cmp_gt_u32 vcc, 4, v{vT}
s_cbranch_scc1 FSD
s_cbranch_vccnz FSP
FSD:
v_cvt_pk_bf16_f32 v26, v26, v26
v_and_b32 v26, s56, v26
v_add_f32 v26, v26, v114
v_cvt_pk_bf16_f32 v26, v26, v26
v_and_b32 v26, s56, v26
v_mul_f32 v26, v26, v24
v_cvt_pk_bf16_f32 v26, v26, v26
v_and_b32 v26, s56, v26
v_add_f32 v26, v26, v112
v_cvt_pk_bf16_f32 v26, v26, v26
global_store_short v116, v26, s[36:37]""")
stamp(4)
A.lab("FIN")
if STAMPS:
    A("s_waitcnt vmcnt(0)")
    stamp(14)
    A("s_branch IOFL")
else: A("s_endpgm")

A(".p2align 12")
A(f"""KG0:
{fs(9)}
s_waitcnt lgkmcnt(0)
s_lshl_b32 s45, s44, 16
s_and_b32 s44, s44, s56
s_bitcmp1_b32 s42, 0
s_cselect_b32 s44, s44, s45
v_mov_b32 v8, {LOG2E}
v_mul_f32 v8, s44, v8
v_exp_f32 v8, v8
s_mov_b32 s52, 0x01000c0c
s_mov_b32 s53, 0
v_cvt_pk_bf16_f32 v8, v8, v8
v_and_b32 v8, s56, v8
v_mul_f32 v10, {LOG2E}, v8
v_mul_f32 v11, {INV2PI}, v8""")
for i in range(12): A(f"v_mov_b32 v{DT+i}, 0")
if OPT["touch"]: A("s_cmp_eq_u32 s5, 1\ns_cbranch_scc1 TC1\ns_branch TC0\nRC:")
A(fs(10))
A("s_waitcnt vmcnt(0)")
stamp(1)
A.lab("KLOOP")
Z = 80
Z8, Z128 = 96, 98
T = 100
for i in range(6): A(f"v_perm_b32 v{T+i}, v{RAW+i}, v{RAW+i}, s52")
A(f"""v_mul_f32 v{T}, v{T}, v10
v_mul_f32 v{T+1}, v{T+1}, v11
v_pk_mul_f32 {vr(T+6,2)}, {vr(T+4,2)}, {vr(T+2,2)} op_sel:[0,0] op_sel_hi:[0,1] neg_hi:[0,1]
v_mul_f32 v{T+8}, 0x41000000, v{T}
v_mul_f32 v{T+9}, 0x41000000, v{T+1}
v_mul_f32 v{T+10}, 0x43000000, v{T}
v_mul_f32 v{T+11}, 0x43000000, v{T+1}
v_pk_fma_f32 {vr(T+6,2)}, {vr(T+4,2)}, {vr(T+2,2)}, {vr(T+6,2)} op_sel:[1,1,0] op_sel_hi:[1,0,1] neg_lo:[0,1,0] neg_hi:[0,1,0]
v_fract_f32 v{T+1}, v{T+1}
v_fract_f32 v{T+9}, v{T+9}
v_fract_f32 v{T+11}, v{T+11}
v_exp_f32 v{T}, v{T}
v_exp_f32 v{T+8}, v{T+8}
v_exp_f32 v{T+10}, v{T+10}
v_cos_f32 v{Z+2}, v{T+1}
v_sin_f32 v{Z+3}, v{T+1}
v_cos_f32 v{Z8}, v{T+9}
v_sin_f32 v{Z8+1}, v{T+9}
v_cos_f32 v{Z128}, v{T+11}
v_sin_f32 v{Z128+1}, v{T+11}
v_pk_mul_f32 {vr(T+6,2)}, {vr(T+6,2)}, v[8:9] op_sel_hi:[1,0]
v_pk_mul_f32 {vr(Z+2,2)}, {vr(Z+2,2)}, {vr(T,2)} op_sel_hi:[1,0]
v_pk_mul_f32 {vr(Z8,2)}, {vr(Z8,2)}, {vr(T+8,2)} op_sel_hi:[1,0] neg_hi:[1,0]
v_pk_mul_f32 {vr(Z128,2)}, {vr(Z128,2)}, {vr(T+10,2)} op_sel_hi:[1,0]""")
def cm(o, w, z): return [f"v_pk_mul_f32 {vr(o,2)}, {vr(w,2)}, {vr(z,2)} op_sel:[0,0] op_sel_hi:[0,1]",
                         f"v_pk_fma_f32 {vr(o,2)}, {vr(w,2)}, {vr(z,2)}, {vr(o,2)} op_sel:[1,1,0] op_sel_hi:[1,0,1] neg_lo:[0,1,0]"]
cv = [0]
def emit_row(src, row):
    r = 140 + (cv[0] % 4); cv[0] += 1
    return [f"v_cvt_pk_bf16_f32 v{r}, v{src}, v{src+1}", f"ds_write_addtid_b32 v{r} offset:{272*row}"]
sB = emit_row(T+6, 41)
bb = [T+6, T+12]
for j in range(1, 16):
    sB += cm(bb[j&1], bb[(j-1)&1], Z8) + emit_row(bb[j&1], 41+j)
PP = 114
def preg(a): return Z128 if a == 1 else (PP+2*(a-2) if a <= 7 else 126+2*(a&1))
def prow(a): return {1:8, 2:16, 3:20, 4:24, 5:26, 6:28, 7:30}.get(a, 32+a-8)
sP = emit_row(Z128, 8)
for a in range(2, 17):
    sP += cm(preg(a), preg(a-1), Z128) + emit_row(preg(a), prow(a))
sZ = emit_row(Z+2, 1)
for b, (p, q) in {2:(1,1), 3:(2,1), 4:(2,2), 5:(4,1), 6:(4,2), 7:(4,3)}.items():
    sZ += cm(Z+2*b, Z+2*p, Z+2*q) + emit_row(Z+2*b, b)
tq = [130, 132, 134, 136]; ti = 0
prods = [(1,b,8+b) for b in range(1,8)] + [(2,2*b,16+b) for b in (1,2,3)] + [(3,2*b,20+b) for b in (1,2,3)] + [(a,4,prow(a)+1) for a in (4,5,6,7)]
sQ = []
for a, b, row in prods:
    o = tq[(ti % 2) + (2 if ti >= 8 else 0)]; ti += 1
    sQ.append(cm(o, preg(a), Z+2*b) + emit_row(o, row))
sZ += sum(sQ[:8], [])
sR = sum(sQ[8:], [])
def retemp(stream, base):
    out = []; n = 0; cur = None
    for t in stream:
        if t.startswith("v_cvt_pk"):
            cur = base + (n & 1); n += 1
            p = t.split(); t = f"{p[0]} v{cur}, {p[2]} {p[3]}"
        elif t.startswith("ds_write_addtid"):
            p = t.split(); t = f"{p[0]} v{cur} {p[2]}"
        out.append(t)
    return out
sB = retemp(sB, 138); sP = retemp(sP, 140); sZ = retemp(sZ, 142); sR = retemp(sR, 144)
streams = [sB, sP, sZ]; pos = [0,0,0,0]; rnd = 0
while True:
    if rnd == 30: streams.append(sR)
    any_ = False
    for i, s in enumerate(streams):
        if pos[i] < len(s): A(s[pos[i]]); pos[i] += 1; any_ = True
    rnd += 1
    if not any_ and rnd > 30: break
for c in range(4):
    for t, row in ((3, 41), (0, 0), (1, 16), (2, 32)):
        A(f"ds_read_b128 {vr(AF+16*c+4*t,4)}, v9 offset:{272*row+64*c}")
A("s_mov_b32 s52, 0x03020c0c\ns_add_u32 s53, s53, 1")
for c in range(4):
    A(f"s_waitcnt lgkmcnt({12-4*c})")
    for t in range(3):
        A(f"v_mfma_f32_16x16x32_bf16 {vr(DT+4*t,4)}, {vr(AF+16*c+4*t,4)}, {vr(AF+16*c+12,4)}, {vr(DT+4*t,4)}")
A("s_cmp_lt_u32 s53, 2\ns_cbranch_scc1 KLOOP")
stamp(2)
D0, D1, D2 = DT, DT+4, DT+8
A(f"""v_lshl_add_u32 v8, v12, 4, s50
v_lshl_add_u32 v10, v13, 10, v8
v_lshl_add_u32 v11, v13, 9, v8
v_lshl_add_u32 v14, v13, 8, v8
v_lshrrev_b32 v15, 1, v13
v_lshl_add_u32 v15, v15, 8, v8
v_and_b32 v9, 1, v13
v_lshl_add_u32 v15, v9, 3, v15
v_lshl_add_u32 v9, v0, 3, s50""")
E = 100
for i in range(4):
    A(f"v_mov_b32_dpp v{E+16+i}, v{D2+i} quad_perm:[0,0,2,2] row_mask:0xf bank_mask:0xf")
for i in range(4):
    A(f"v_cvt_pk_bf16_f32 v{E+4*i}, v{E+16+i}, v{D2+i}")
    for q in range(1, 4): A(f"v_cvt_pk_bf16_f32 v{E+4*i+q}, v{D2+i}, v{D2+i}")
A("s_mov_b32 exec_hi, 1")
for i in range(4):
    A(f"ds_write_b128 v10, {vr(E+4*i,4)} offset:{KXO+2*(1024+128*i-4)}")
    if i == 0: A("s_mov_b32 exec_hi, 0")
A("s_mov_b64 exec, -1")
E2 = 120
for h in range(2):
    a, b = D1+2*h, D1+2*h+1
    A(f"""v_cvt_pk_bf16_f32 v{E2+4*h}, v{a}, v{a}
    v_cvt_pk_bf16_f32 v{E2+4*h+1}, v{a}, v{a}
    v_cvt_pk_bf16_f32 v{E2+4*h+2}, v{a}, v{b}
    v_cvt_pk_bf16_f32 v{E2+4*h+3}, v{b}, v{b}""")
A(f"""v_cvt_pk_bf16_f32 v{E2+8}, v{D1}, v{D1}
v_cvt_pk_bf16_f32 v{E2+9}, v{D1}, v{D1+1}
v_cvt_pk_bf16_f32 v{E2+10}, v{D1+2}, v{D1+2}
v_cvt_pk_bf16_f32 v{E2+11}, v{D1+2}, v{D1+3}
v_cvt_pk_bf16_f32 v{E2+12}, v{D0}, v{D0+1}
v_cvt_pk_bf16_f32 v{E2+13}, v{D0+2}, v{D0+3}
s_mov_b32 exec_lo, 0
ds_write_b128 v11, {vr(E2,4)} offset:{KXO-4}
ds_write_b128 v11, {vr(E2+4,4)} offset:{KXO-4+256}
s_mov_b32 exec_lo, -1
s_mov_b32 exec_hi, 0
ds_write_b128 v14, {vr(E2+8,4)} offset:{KXO+2*(256-1)}
s_mov_b64 exec, 31
ds_write_b64 v9, v[4:5]
s_mov_b64 exec, -1
ds_write_b64 v15, {vr(E2+12,2)} offset:{KXO}""")
A(f"""v_and_b32 v8, 3, v0
v_lshrrev_b32 v9, 2, v12
v_sub_u32 v9, v8, v9
v_lshlrev_b32 v9, 3, v9
v_lshlrev_b32 v10, 6, v13
v_sub_u32 v9, v9, v10
s_add_u32 s42, s50, {KXO+192}
v_add_u32 v9, s42, v9""")
for q in range(16):
    for h in range(2):
        A(f"ds_read_b64_tr_b16 {vr(AF+4*q+2*h,2)}, v9 offset:{256*q+32-32*h}")
A(f"""v_lshlrev_b32 v10, 3, v12
v_lshl_add_u32 v10, v13, 4, v10
s_add_u32 s42, s51, 8
v_add_u32 v10, s42, v10
v_mul_u32_u24 v11, {UPH}, v8
v_lshl_add_u32 v11, v13, 4, v11
s_add_u32 s42, s51, 128
v_add_u32 v11, s42, v11
v_mul_u32_u24 v14, 272, v12
v_lshl_add_u32 v14, v13, 6, v14
s_lshl_b32 s42, s7, 2
s_add_u32 s42, s42, {Y0}
v_add_u32 v14, s42, v14
v_cmp_gt_u32 vcc, 16, v0
v_add_u32 v15, 47, v0
v_subrev_u32 v9, 16, v0
v_cndmask_b32 v15, v9, v15, vcc
v_writelane_b32 v15, -1, 0
s_add_u32 s42, s50, {CAR}
v_lshl_add_u32 v15, v15, 4, s42
v_lshl_add_u32 v8, v0, 4, s42
v_lshl_add_u32 v9, v0, 2, s42
v_subrev_u32 v9, 256, v9
s_mov_b64 exec, 1
ds_write_b128 v15, v[4:7]
s_mov_b64 exec, -1""")
stamp(3)
A("s_sub_u32 s57, 4, s5")
spin(C_U, "s57", vM, vT)
stamp(4)
A("s_setprio 1\ns_cmp_eq_u32 s5, 1\ns_cbranch_scc1 CONV1\ns_branch CONV0")

def conv(blocks, coff, nbx, xloc, xpos):
    items = []
    emax = 2*max(blocks)
    for e in range(-1, emax+1):
        for rho in range(4):
            ms = [(ACC+16*i+4*rho, 2*nb-e, e == -1) for i, nb in reversed(list(enumerate(blocks))) if e <= 2*nb]
            done = [i for i, nb in enumerate(blocks) if e == 2*nb and rho == 3]
            items.append(dict(kind="b", off=rho*UPH+64*(e+1), ms=ms, done=done))
    xi = [dict(kind="x", off=64*t, ms=[(XT, 2*nbx-1-t, t == 0)], done=(["x"] if t == 2*nbx-1 else [])) for t in range(2*nbx)]
    out = items[:xpos]; rest = items[xpos:]
    while xi or rest:
        if xi: out.append(xi.pop(0))
        if rest: out.append(rest.pop(0))
    items = out
    fifo = []
    def ds(text, tag=None):
        A(text); fifo.append(tag)
    def loads(n):
        it = items[n]; b = BB + 4*(n % 8)
        if it["kind"] == "b":
            return [(f"ds_read_b64 {vr(b,2)}, v10 offset:{it['off']}", n), (f"ds_read_b64 {vr(b+2,2)}, v10 offset:{it['off']+8}", n)]
        return [(f"ds_read_b128 {vr(b,4)}, v11 offset:{it['off']}", n)]
    def finish(i):
        if i == "x":
            return [f"v_add_f32_dpp v{XT+3}, v{XT+2}, v{XT+3} row_shl:1 row_mask:0xf bank_mask:0xf bound_ctrl:0",
                    f"v_add_f32_dpp v{XT+3}, v{XT+1}, v{XT+3} row_shl:2 row_mask:0xf bank_mask:0xf bound_ctrl:0",
                    f"s_mov_b32 exec_lo, 0|s_mov_b32 exec_hi, 0xe0000000|ds_write_b32 v9, v{XT+3} offset:{coff[xloc]}|s_mov_b64 exec, -1"]
        d = [ACC+16*i+4*r for r in range(4)]
        o = i*YBLK; t = 184
        return [f"v_add_f32 v{d[3]+1}, v{d[3]+1}, v{d[2]+2}",
                f"v_add_f32 v{d[3]+2}, v{d[3]+2}, v{d[2]+3}",
                f"v_add_f32 v{d[3]+1}, v{d[3]+1}, v{d[1]+3}",
                f"v_add_f32 v{d[0]+3}, v{d[0]+3}, v{d[1]+2}",
                f"ds_write_b128 v8, {vr(d[3],4)} offset:{coff[i]}",
                f"ds_read_b128 {vr(t,4)}, v15 offset:{coff[i]}@c{i}",
                f"v_add_f32 v{d[0]+1}, v{d[0]+1}, v{d[1]}",
                f"v_add_f32 v{d[0]+3}, v{d[0]+3}, v{d[2]+1}",
                f"v_add_f32 v{d[0]+2}, v{d[0]+2}, v{d[1]+1}",
                f"v_add_f32 v{d[0]+3}, v{d[0]+3}, v{d[3]}",
                f"v_add_f32 v{d[0]+2}, v{d[0]+2}, v{d[2]}",
                f"ds_write_b32 v14, v{d[0]+3} offset:{o+48}",
                "", "", "", "", "", "",
                f"#c{i}|v_add_f32 v{d[0]}, v{d[0]}, v{t+1}",
                f"v_add_f32 v{d[0]+1}, v{d[0]+1}, v{t+2}",
                f"v_add_f32 v{d[0]+2}, v{d[0]+2}, v{t+3}",
                f"ds_write_b32 v14, v{d[0]} offset:{o}",
                f"ds_write_b32 v14, v{d[0]+1} offset:{o+16}",
                f"ds_write_b32 v14, v{d[0]+2} offset:{o+32}",
                f"s_mov_b64 exec, 1|ds_add_u32 v{vM}, v{vOne} offset:{C_Y+4*i}|s_mov_b64 exec, -1"]
    def wait(tag):
        ks = [k for k, t in enumerate(fifo) if t == tag]
        if not ks: return
        A(f"s_waitcnt lgkmcnt({min(len(fifo)-1-ks[-1],15)})")
        del fifo[:ks[-1]+1]
    DEPTH = 6
    lq = []; nl = 0; fq = []
    def emit_f(t):
        for p in t.split("|"):
            if p == "": continue
            if p.startswith("#"): wait(p[1:])
            elif p.startswith("ds_"): ds(*p.split("@"))
            else: A(p)
    for n in range(min(DEPTH, len(items))):
        for t, tag in loads(n): ds(t, tag)
    nl = min(DEPTH, len(items)); mc = 0
    for n, it in enumerate(items):
        while lq and lq[0][1] <= n: ds(*lq.pop(0))
        wait(n)
        if nl < len(items) and nl <= n + DEPTH: lq += loads(nl); nl += 1
        b = BB + 4*(n % 8)
        for acc, q, first in it["ms"]:
            A(f"v_mfma_f32_16x16x32_bf16 {vr(acc,4)}, {vr(AF+4*q,4)}, {vr(b,4)}, " + ("0" if first else vr(acc,4)))
            mc += 1
            for _ in range(2):
                if lq: ds(*lq.pop(0))
                elif fq and fq[0][0] <= mc: emit_f(fq.pop(0)[1])
        for i in it["done"]:
            fq += [(mc+3, t) for t in finish(i)]
    for _, t in fq: emit_f(t)
A(".p2align 12")
if OPT["touch"]: A("TC0:\ns_branch RC")
A.lab("CONV0")
conv([0,1,6,7], [0, 1024, 2064, 3088], 6, 2, 16)
stamp(5)
A("s_branch KFL" if STAMPS else "s_endpgm")
A(".p2align 12")
if OPT["touch"]: A("TC1:\ns_branch RC")
A.lab("CONV1")
conv([2,3,4,5], [0, 1024, 2048, 3072], 2, 0, 2)
stamp(5)
A("s_branch KFL" if STAMPS else "s_endpgm")
A(".p2align 12")
service()
if STAMPS:
    A("KFL:")
    stamp_flush(2)
    A("s_endpgm\nIOFL:")
    stamp_flush(1)
A.lab("END")
A("s_endpgm")

n = A.fix(verbose=bool(OPT.get("v", 0)))
hdr = open("recurrent_scan__ssm_conv_s4__moe_arch_mod__prompt.s.ref").read().split("; Override launch")[0]
out = hdr + f"""; @launch grid=(256,1,1) block=(512,1,1) lds={LDS_TOTAL}
.amdgcn_target "amdgcn-amd-amdhsa--gfx950"
.text
.globl {NAME}
.p2align 12
.type {NAME},@function
{NAME}:
""" + A.text() + f""".section .rodata,"a"
.p2align 6
.amdhsa_kernel {NAME}
  .amdhsa_next_free_vgpr 256
  .amdhsa_next_free_sgpr 102
  .amdhsa_accum_offset 256
  .amdhsa_group_segment_fixed_size 0
  .amdhsa_kernarg_size 136
  .amdhsa_user_sgpr_count 2
  .amdhsa_user_sgpr_kernarg_segment_ptr 1
  .amdhsa_system_sgpr_workgroup_id_x 1
.end_amdhsa_kernel
"""
open(sys.argv[1], "w").write(out)
print("nops inserted", n, "lines", len(A.L), "lds", LDS_TOTAL)
```
